```python
import torch

def _softmax(x, axis=-1):
    return torch.softmax(x, dim=axis)
def _gelu(x):
    return torch.nn.functional.gelu(x, approximate="tanh")
def _silu(x):
    return torch.nn.functional.silu(x)
def _sigmoid(x):
    return torch.sigmoid(x)
def _layernorm(x, axis=-1, eps=1e-5):
    m = x.mean(dim=axis, keepdim=True)
    v = x.var(dim=axis, keepdim=True, unbiased=False)
    return (x - m) / torch.sqrt(v + eps)
def _scatter_add(tgt, idx, src, axis=0):
    return tgt.clone().index_add_(axis, idx, src)
def _segment_sum(src, seg, n):
    out = torch.zeros((n,) + src.shape[1:], dtype=src.dtype)
    return out.index_add_(0, seg, src)
def _pad(x, pw):
    flat = tuple(v for pair in reversed(pw) for v in pair)
    return torch.nn.functional.pad(x, flat)

kernel_name = 'parallel_sum__sliding_block_cached__dense_activation_mish__decode'

def setup_inputs():

    _w = (lambda a: (lambda t: t.to(torch.bfloat16) if t.is_floating_point() else t)(torch.as_tensor(a)))
    def _A_setup():
        B, Sq, D = 4, 1, 448
        Hq, Hkv, Sk, Dh = 16, 8, 4096, 256
        assert Hq % Hkv == 0, (Hq, Hkv)
        return {
            "x": _w((lambda *s: torch.randn(*s, dtype=torch.bfloat16) * 0.05)(B, Sq, D)),
            "k_cache": _w((lambda *s: torch.randn(*s, dtype=torch.bfloat16) * 1.6)(B, Hkv, Sk, Dh)),
            "v_cache": _w((lambda *s: torch.randn(*s, dtype=torch.bfloat16) * 0.4)(B, Hkv, Sk, Dh)),
            "wq": _w((lambda *s: torch.randn(*s, dtype=torch.bfloat16) * 1.6)(D, Hq * Dh) * (D ** -0.5)),
            "wo": _w((lambda *s: torch.randn(*s, dtype=torch.bfloat16) * 0.4)(Hq * Dh, D) * ((Hq * Dh) ** -0.5)),
        }
    _A_in = _A_setup()

    def _B_setup():
        B, S, D, F = 4, 1, 448, 1792
        return {
            "x": _w((lambda *s: torch.randn(*s, dtype=torch.bfloat16) * 0.05)(B, S, D)),
            "w1": _w((lambda *s: torch.randn(*s, dtype=torch.bfloat16) * 0.8)(D, F) * (D ** -0.5)),
            "b1": _w((lambda *s: torch.randn(*s, dtype=torch.bfloat16) * 0.2)(F)),
            "w2": _w((lambda *s: torch.randn(*s, dtype=torch.bfloat16) * 0.1)(F, D) * (F ** -0.5)),
        }
    _B_in = _B_setup()

    return {
        "A_x": _A_in["x"],
        "A_k_cache": _A_in["k_cache"],
        "A_v_cache": _A_in["v_cache"],
        "A_wq": _A_in["wq"],
        "A_wo": _A_in["wo"],
        "B_x": _B_in["x"],
        "B_w1": _B_in["w1"],
        "B_b1": _B_in["b1"],
        "B_w2": _B_in["w2"],
    }

def reference(A_x, A_k_cache, A_v_cache, A_wq, A_wo, B_x, B_w1, B_b1, B_w2):
    def _A_ref(x, k_cache, v_cache, wq, wo):
        B, Sq, D = x.shape
        Hq, Dh = 16, 256
        Hkv, Sk = k_cache.shape[1], k_cache.shape[2]
        W = min(4096, max(256, Sk // 4))
        rep = Hq // Hkv
        q = (lambda x, *d: x.permute(*d))((x @ wq).reshape(B, Sq, Hq, Dh), 0, 2, 1, 3)
        k = (lambda x, n, axis: torch.repeat_interleave(x, n, dim=axis))(k_cache[:, :, Sk - W:, :], rep, axis=1)
        v = (lambda x, n, axis: torch.repeat_interleave(x, n, dim=axis))(v_cache[:, :, Sk - W:, :], rep, axis=1)
        scores = torch.einsum("bhqd,bhkd->bhqk", q, k) * (Dh ** -0.5)
        p = _softmax(scores, axis=-1)
        o = torch.einsum("bhqk,bhkd->bhqd", p, v)
        return (lambda x, *d: x.permute(*d))(o, 0, 2, 1, 3).reshape(B, Sq, Hq * Dh) @ wo

    def _B_ref(x, w1, b1, w2):
        h = torch.einsum("bsd,df->bsf", x, w1) + b1
        sp = torch.log1p(torch.exp(-torch.abs(h))) + torch.where(h > 0, h, torch.zeros_like(h))
        act = h * torch.tanh(sp)
        return torch.einsum("bsf,fd->bsd", act, w2)

    x = A_x
    xn = _layernorm(x, axis=-1)
    return x + _A_ref(xn, A_k_cache, A_v_cache, A_wq, A_wo) + _B_ref(xn, B_w1, B_b1, B_w2)
```

```python
NAME = "parallel_sum__sliding_block_cached__dense_activation_mish__decode"
HEADER = open("cdna_kernels/%s.s.ref" % NAME).read().split("; Override launch")[0]

class Asm:
    def __init__(self):
        self.lines = []
        self.nlabel = 0
    def __call__(self, s, *a):
        for l in (s % a if a else s).split("\n"):
            l = l.strip()
            if l: self.lines.append(("    " + l) if not l.endswith(":") else l)
    def label(self, p="L"):
        self.nlabel += 1
        return "%s_%d" % (p, self.nlabel)
    def text(self):
        return "\n".join(self.lines) + "\n"

def wrap(body, grid, block, lds, vgpr=256, sgpr=102, accum=None):
    if accum is None: accum = (vgpr + 3) // 4 * 4
    k = NAME + "_kernel"
    return (HEADER +
        "; @launch grid=(%d,1,1) block=(%d,1,1) lds=%d\n" % (grid, block, lds) +
        '.amdgcn_target "amdgcn-amd-amdhsa--gfx950"\n.text\n.globl %s\n.p2align 8\n.type %s,@function\n%s:\n' % (k, k, k) +
        body +
        '.section .rodata,"a"\n.p2align 6\n.amdhsa_kernel %s\n' % k +
        "  .amdhsa_next_free_vgpr %d\n  .amdhsa_next_free_sgpr %d\n  .amdhsa_accum_offset %d\n" % (vgpr, sgpr, accum) +
        "  .amdhsa_group_segment_fixed_size 0\n  .amdhsa_kernarg_size 96\n  .amdhsa_user_sgpr_count 2\n"
        "  .amdhsa_user_sgpr_kernarg_segment_ptr 1\n  .amdhsa_system_sgpr_workgroup_id_x 1\n.end_amdhsa_kernel\n")

STAMP_OFF = 128 << 20
```

```python
import re
TRANS = ("v_exp_f32", "v_log_f32", "v_rcp_f32", "v_rsq_f32", "v_sqrt_f32", "v_sin_f32", "v_cos_f32")
def regs(tok, kind):
    tok = tok.strip()
    tok = re.sub(r"^-|^\||\|$", "", tok)
    m = re.match(r"^-?abs\((.*)\)$", tok)
    if m: tok = m.group(1)
    tok = tok.strip("|-")
    m = re.match(r"^%s(\d+)$" % kind, tok)
    if m: return {int(m.group(1))}
    m = re.match(r"^%s\[(\d+):(\d+)\]$" % kind, tok)
    if m: return set(range(int(m.group(1)), int(m.group(2)) + 1))
    return set()
class I:
    pass
def parse(line):
    s = line.split(";")[0].strip()
    i = I(); i.text = line; i.op = ""; i.ws = 1
    i.vw = set(); i.vr = set(); i.sw = set(); i.sr = set(); i.cls = "other"
    i.wexec = False; i.wm0 = False; i.srcc = set(); i.srcab = set(); i.sdata = set()
    if not s or s.endswith(":") or s.startswith("."):
        i.ws = 0; i.cls = "label"; return i
    parts = s.split(None, 1)
    op = parts[0]; i.op = op
    rest = parts[1] if len(parts) > 1 else ""
    ops = [o.strip() for o in re.split(r",(?![^\[]*\])", rest)]
    mods = ""
    if ops:
        lp = ops[-1].split(None, 1)
        if len(lp) > 1: ops[-1] = lp[0]; mods = lp[1]
    i.mods = mods
    def sset(tok):
        if tok == "vcc": return {"vcc"}
        if tok == "exec": return {"exec"}
        if tok == "m0": return {"m0"}
        return regs(tok, "s")
    if op == "s_nop":
        i.ws = int(ops[0], 0) + 1; i.cls = "nop"; return i
    if op.startswith("v_mfma"):
        i.cls = "mfma"; i.vw = regs(ops[0], "v"); i.srcab = regs(ops[1], "v") | regs(ops[2], "v"); i.srcc = regs(ops[3], "v")
        i.vr = i.srcab | i.srcc
        i.passes = 8 if "32x32" in op else 4
        return i
    if op.startswith("v_"):
        i.cls = "valu"
        i.dpp = ("quad_perm" in s or "row_" in s.replace("row_mask", ""))
        i.perml = op.startswith("v_permlane")
        i.trans = any(op.startswith(t) for t in TRANS)
        i.dot = op.startswith("v_dot")
        if op.startswith("v_cmp"):
            i.sw = sset(ops[0]); src = ops[1:]
            if op.startswith("v_cmpx"): i.wexec = True
        elif op.startswith("v_readfirstlane") or op.startswith("v_readlane"):
            i.sw = sset(ops[0]); src = ops[1:]; i.rdlane = True
        elif i.perml:
            i.vw = regs(ops[0], "v") | regs(ops[1], "v"); src = ops
        else:
            i.vw = regs(ops[0], "v"); src = ops[1:]
            if op.startswith("v_fmac") or op.startswith("v_dot2c") or i.dpp: src = ops
            if op.startswith("v_add_co") or op.startswith("v_addc_co") or op.startswith("v_sub_co"):
                i.sw = sset(ops[1]); src = ops[2:]
        for t in src:
            i.vr |= regs(t, "v"); i.sr |= sset(t)
        return i
    if op.startswith("buffer_") or op.startswith("global_"):
        i.cls = "vmem"
        i.lds = bool(re.search(r"\blds\b", s)) or "load_lds" in op
        if "store" in op:
            for t in ops: i.vr |= regs(t, "v"); i.sr |= sset(t)
            d = ops[0] if op.startswith("buffer_") else ops[1]
            if "x4" in op or "x3" in op: i.sdata = regs(d, "v")
        elif i.lds:
            for t in ops: i.vr |= regs(t, "v"); i.sr |= sset(t)
        else:
            i.vw = regs(ops[0], "v")
            for t in ops[1:]: i.vr |= regs(t, "v"); i.sr |= sset(t)
        return i
    if op.startswith("ds_"):
        i.cls = "ds"
        if "read" in op or "permute" in op or "swizzle" in op:
            i.vw = regs(ops[0], "v")
            for t in ops[1:]: i.vr |= regs(t, "v")
        else:
            for t in ops: i.vr |= regs(t, "v")
        return i
    if op.startswith("s_"):
        i.cls = "salu"
        if ops and ops[0] == "m0" and not op.startswith("s_cmp"): i.wm0 = True
        return i
    return i
def need(p, c):
    n = 0
    if p.cls == "valu":
        if c.cls == "mfma" and (p.vw & c.vr): n = max(n, 3 if p.dot else 2)
        if c.cls == "mfma" and p.wexec: n = max(n, 4)
        if c.cls == "valu":
            if c.dpp and (p.vw & c.vr): n = max(n, 2)
            if c.dpp and p.wexec: n = max(n, 5)
            if c.perml and (p.vw & c.vr): n = max(n, 2)
            if c.perml and p.wexec: n = max(n, 4)
            if getattr(c, "rdlane", False) and (p.vw & c.vr): n = max(n, 1)
            if getattr(c, "rdlane", False) and p.wexec: n = max(n, 4)
            if p.trans and not c.trans and (p.vw & c.vr): n = max(n, 1)
            if p.trans and c.trans and (p.vw & c.vr): n = max(n, 1)
            if p.sw and (p.sw & c.sr): n = max(n, 2)
            if p.dot and ((p.vw & c.vr) or (p.vw & c.vw)) and not (c.op == p.op): n = max(n, 3)
        if c.cls == "vmem" and p.sw and (p.sw & c.sr): n = max(n, 5)
        if c.cls in ("vmem", "ds") and p.dot and (p.vw & c.vr): n = max(n, 3)
        if c.cls in ("vmem", "ds") and p.trans and (p.vw & c.vr): n = max(n, 1)
    if p.cls == "mfma":
        big = {4: 8, 8: 12}[p.passes]
        if c.cls == "mfma":
            if p.vw & c.srcab: n = max(n, big)
            if (p.vw & c.srcc) and not (p.vw == c.srcc and p.op == c.op): n = max(n, {4: 6, 8: 10}[p.passes])
            if (p.vw & c.vw) and not (p.vw == c.srcc): n = max(n, big)
        elif c.cls in ("valu", "vmem", "ds"):
            if (p.vw & c.vr) or (p.vw & c.vw): n = max(n, big)
            if c.cls == "valu" and (p.srcc & c.vw): n = max(n, {4: 3, 8: 7}[p.passes])
    if p.cls == "vmem" and p.sdata:
        if c.cls in ("valu", "mfma") and (p.sdata & c.vw): n = max(n, 2)
        elif (p.sdata & c.vw): n = max(n, 1)
    if p.cls == "salu" and p.wm0 and c.cls == "vmem" and c.lds: n = max(n, 1)
    return n
def fix(lines):
    out = []
    added = 0
    for line in lines:
        c = parse(line)
        if c.cls not in ("label", "nop"):
            dist = 0; req = 0
            for p in reversed(out):
                if dist >= 20: break
                if p.cls not in ("label", "nop"):
                    r = need(p, c) - dist
                    if r > req: req = r
                dist += p.ws
            while req > 0:
                k = min(req, 16)
                out.append(parse("    s_nop %d" % (k - 1))); req -= k; added += 1
        out.append(c)
    return [i.text for i in out]
```

```python
import sys, math, struct
from asmlib import *
import hazard
opt = dict(stamps="0", pol="nt", local="1", spin="20000", n1="6", b1wait="63", wfirst="0", warm="1", slp="1", rpol="sc1", rpipe="0", rslp="1", b2b="0")
for x in sys.argv[2:]:
    k, v = x.split("="); opt[k] = v
POL = {"nt": " nt", "none": "", "sc1nt": " sc1 nt"}[opt["pol"]]
RPOL = {"sc1": " sc1", "sys": " sc0 sc1"}[opt["rpol"]]
STAMPS = int(opt["stamps"]); SPIN = int(opt["spin"]); N1 = int(opt["n1"]); WFIRST = int(opt["wfirst"]); SLP = int(opt["slp"])

QP, HP, RA, RB, STO, FP = 0x10000, 0x90000, 0x100000, 0x200000, 0x80000, 0x300000
LT0, LT1, LW, LW2, LQ, LS, LRED, LFLAG = 0, 14336, 28672, 45056, 53248, 54272, 55296, 59392
LDS_BYTES = 98304
sWAVE, sX8, sR, sB, sS, sTAG, sSPIN, sXCC, sTGX = 3, 28, 29, 30, 31, 32, 33, 34, 35
SRD_X, SRD_KV, SRD_T, SRD_W2, SRD_WS, SRD_O = 4, 8, 12, 16, 20, 24
pX, pK, pV, pWQ, pWO, pW1, pB1, pW2, pOUT, pWS = 64, 66, 68, 70, 72, 76, 78, 80, 82, 86
sM1, sM2, sM3 = 88, 90, 92
LOG2E = 1.4426950408889634
def f2u(f): return struct.unpack("<I", struct.pack("<f", f))[0]
def srd(n): return "s[%d:%d]" % (n, n + 3)
def sp(n): return "s[%d:%d]" % (n, n + 1)
def v4(n): return "v[%d:%d]" % (n, n + 3)
def v2(n): return "v[%d:%d]" % (n, n + 1)
DPPM = " row_mask:0xf bank_mask:0xf"
MF = "v_mfma_f32_16x16x32_bf16"

a = Asm()
def stamp(i):
    if STAMPS and i < 12:
        a("s_memrealtime s[%d:%d]" % (40 + 2 * i, 41 + 2 * i)); a("s_waitcnt lgkmcnt(0)")
def rows_allreduce(op, xs, ts):
    for sw in ("v_permlane16_swap_b32", "v_permlane32_swap_b32"):
        for x, t in zip(xs, ts): a("v_mov_b32 v%d, v%d" % (t, x))
        for x, t in zip(xs, ts): a("%s v%d, v%d" % (sw, x, t))
        for x, t in zip(xs, ts): a("%s v%d, v%d, v%d" % (op, x, x, t))
def dpp_red(op, x, ctrl): a("%s_dpp v%d, v%d, v%d %s%s" % (op, x, x, x, ctrl, DPPM))
def bf16_round(x):
    a("v_cvt_pk_bf16_f32 v%d, v%d, v%d" % (x, x, x)); a("v_lshlrev_b32 v%d, 16, v%d" % (x, x))
def check_tags(eq, xo=()):
    for t in eq: a("v_cmpx_eq_u32 vcc, s%d, v%d" % (sTAG, t))
    for t in xo:
        a("v_xor_b32 v%d, s%d, v%d" % (t, sTAG, t)); a("v_cmpx_gt_u32 vcc, 16, v%d" % t)
    a("s_cmp_eq_u64 exec, -1")
    a("s_mov_b64 exec, -1")
RETRY = []
def poll_check(name, issue, eq, xo=(), sleep=None):
    a("%s_chk:" % name)
    check_tags(eq, xo)
    a("s_cbranch_scc0 %s_retry" % name)
    a("%s_ok:" % name)
    a("s_nop 2")
    RETRY.append((name, issue, sleep))
def emit_retries():
    for name, issue, sleep in RETRY:
        a("%s_retry:" % name)
        a("s_cmp_eq_u32 s%d, 0" % sSPIN)
        a("s_cbranch_scc1 %s_ok" % name)
        a("s_sub_u32 s%d, s%d, 1" % (sSPIN, sSPIN))
        if sleep: a("s_sleep %d" % sleep)
        issue()
        a("s_waitcnt vmcnt(0)")
        a("s_branch %s_chk" % name)
def make_tag():
    a("s_waitcnt lgkmcnt(0)")
    a("s_mul_i32 s%d, s%d, 1664525" % (sTAG, sTAG)); a("s_add_u32 s%d, s%d, 1013904223" % (sTAG, sTAG))
def tr_addrs():
    a("v_lshrrev_b32 v12, 2, v0"); a("v_lshlrev_b32 v12, 7, v12"); a("v_lshl_add_u32 v12, v5, 3, v12")
    a("v_and_b32 v13, 3, v11"); a("v_lshl_add_u32 v12, v13, 5, v12")
    for tp in range(1, 4): a("v_xor_b32 v%d, %d, v12" % (12 + tp, 32 * tp))

a("s_cmp_ge_u32 s2, 256")
a("s_cbranch_scc1 EXIT")
if STAMPS: a("s_memrealtime s[40:41]")
a("s_load_dwordx16 s[64:79], s[0:1], 0")
a("s_load_dwordx8 s[80:87], s[0:1], 64")
a("s_getpc_b64 s[36:37]")
a("v_mul_u32_u24 v1, 20, v0")
a("global_load_dword v215, v1, s[36:37]")
a("v_lshrrev_b32 v1, 6, v0")
a("v_and_b32 v0, 63, v0")
a("v_readfirstlane_b32 s%d, v1" % sWAVE)
a("s_and_b32 s%d, s2, 7" % sX8)
a("s_lshr_b32 s%d, s2, 3" % sR)
a("s_lshr_b32 s%d, s2, 6" % sB)
a("s_bfe_u32 s%d, s2, 0x30003" % sS)
a("s_getreg_b32 s%d, hwreg(HW_REG_XCC_ID, 0, 4)" % sXCC)
a("s_mov_b32 s%d, %d" % (sSPIN, SPIN))
for n, size in ((SRD_X, 3584), (SRD_KV, 1 << 26), (SRD_T, 448 * 8192), (SRD_W2, 1792 * 896), (SRD_WS, 1 << 28), (SRD_O, 3584)):
    a("s_mov_b32 s%d, 0x%x" % (n + 2, size)); a("s_mov_b32 s%d, 0x20000" % (n + 3))
a("s_lshl_b32 s36, s%d, 3" % sB); a("s_add_u32 s36, s36, s%d" % sX8); a("s_lshl_b32 s36, s36, 21")
a("s_lshl_b32 s37, s%d, 16" % sS); a("s_add_u32 s36, s36, s37"); a("s_add_u32 s36, s36, %d" % (3072 * 512))
a("v_lshrrev_b32 v4, 4, v0"); a("v_and_b32 v5, 3, v0"); a("v_bfe_u32 v3, v0, 2, 2"); a("v_lshrrev_b32 v11, 3, v0")
a("v_lshlrev_b32 v10, 1, v4"); a("v_xor_b32 v10, v10, v0"); a("v_and_b32 v10, 7, v10"); a("v_lshlrev_b32 v10, 4, v10")
a("s_lshl_b32 s39, s%d, 5" % sX8); a("s_add_u32 s39, s39, s%d" % sR)
a("s_cmp_lg_u32 s%d, 0" % sWAVE)
a("s_cbranch_scc1 NOTW0")
XS, XF = 84, 100
a("s_setprio 3")
a("s_mul_i32 s98, s%d, %d" % (sB, 112 * 8192)); a("s_lshl_b32 s97, s%d, 10" % sX8); a("s_add_u32 s98, s98, s97")
a("s_lshl_b32 s97, s%d, 7" % sS); a("s_add_u32 s98, s98, s97")
a("s_mul_i32 s99, s%d, %d" % (sB, 112 * 3584)); a("s_mul_i32 s97, s%d, 448" % sX8); a("s_add_u32 s99, s99, s97")
a("s_lshl_b32 s97, s%d, 6" % sS); a("s_add_u32 s99, s99, s97")
a("s_cmp_eq_u32 s%d, 7" % sS); a("s_cselect_b32 s99, 0x40000000, s99")
a("v_mul_u32_u24 v6, 896, v3"); a("v_lshl_add_u32 v7, v4, 2, v5")
a("v_lshl_add_u32 v8, v4, 3, v6"); a("v_lshl_add_u32 v1, v7, 3, v6"); a("v_lshl_add_u32 v6, v7, 4, v6")
a("v_lshl_add_u32 v9, v11, 13, v10")
a("v_lshrrev_b32 v2, 2, v0"); a("v_mul_u32_u24 v2, 3584, v2"); a("v_and_b32 v7, 48, v10"); a("v_add_u32 v2, v2, v7")
a("s_mul_i32 s37, s%d, 224" % sB)
a("s_mov_b32 m0, %d" % LT0)
a("v_mov_b32 v16, 0"); a("v_mov_b32 v17, 0")
a("ds_write_b64 v16, v[16:17] offset:%d" % LFLAG); a("ds_write_b64 v16, v[16:17] offset:%d" % (LFLAG + 8))
a("s_waitcnt lgkmcnt(0)")
a("s_mov_b64 %s, %s" % (sp(SRD_T), sp(pWQ)))
a("s_mov_b64 %s, %s" % (sp(SRD_X), sp(pX)))
a("s_mov_b64 %s, %s" % (sp(SRD_W2), sp(pW1)))
for t in range(14):
    a("buffer_load_dwordx4 v9, %s, s98 offen%s lds" % (srd(SRD_T), POL))
    if t == 1:
        for i in range(3): a("buffer_load_dwordx4 %s, v6, %s, 0 offen offset:%d" % (v4(XS + 4 * i), srd(SRD_X), 256 * i))
        a("buffer_load_dwordx2 %s, v1, %s, 0 offen offset:768" % (v2(XS + 12), srd(SRD_X)))
        for m in range(7): a("buffer_load_dwordx2 %s, v8, %s, s37 offen offset:%d" % (v2(XF + 2 * m), srd(SRD_X), 32 * m))
    a("s_add_u32 m0, m0, 1024")
    if t < 13: a("s_add_u32 s98, s98, %d" % (8 * 8192))
for t in range(7):
    a("buffer_load_dwordx4 v2, %s, s99 offen%s lds" % (srd(SRD_W2), POL))
    if t < 6: a("s_add_u32 m0, m0, 1024"); a("s_add_u32 s99, s99, %d" % (16 * 3584))
a("s_load_dword s%d, %s, 0" % (sTAG, sp(pWS)))
a("s_mov_b64 %s, %s" % (sp(SRD_WS), sp(pWS)))
a("s_mov_b64 %s, %s" % (sp(SRD_KV), sp(pV)))
a("s_branch V_PROJ")

a("NOTW0:")
a("s_cmp_ge_u32 s%d, 4" % sWAVE)
a("s_waitcnt lgkmcnt(0)")
a("s_load_dword s%d, %s, 0" % (sTAG, sp(pWS)))
a("s_mov_b64 %s, %s" % (sp(SRD_WS), sp(pWS)))
a("s_cselect_b64 %s, %s, %s" % (sp(SRD_KV), sp(pK), sp(pV)))
a("s_cbranch_scc1 KWAVE")
if opt["warm"] == "1":
    a("s_lshl_b32 s94, s39, 11"); a("s_lshl_b32 s95, s%d, 10" % sWAVE); a("s_add_u32 s94, s94, s95"); a("s_add_u32 s94, s94, 0x%x" % (RA - 1024))
    a("s_lshl_b32 s95, s%d, 10" % sX8); a("s_add_u32 s95, s95, 0x%x" % (RA + STO))
    a("s_cmp_eq_u32 s%d, 3" % sWAVE); a("s_cselect_b32 s94, s95, s94")
    a("v_lshlrev_b32 v1, 4, v0")
a("s_barrier")
if opt["warm"] == "1":
    a("buffer_load_dwordx4 v[212:215], v1, %s, s94 offen sc1" % srd(SRD_WS))
make_tag()
a("s_branch V_B2")

a("KWAVE:")
KR = 16
a("s_sub_u32 s%d, s%d, 4" % (sWAVE, sWAVE))
a("s_setprio 2")
a("v_lshlrev_b32 v1, 11, v3"); a("v_lshl_add_u32 v1, v4, 6, v1"); a("v_lshl_add_u32 v1, v5, 4, v1")
a("s_lshl_b32 s37, s%d, 14" % sWAVE); a("s_add_u32 s36, s36, s37")
a("s_lshr_b32 s38, s%d, 1" % sWAVE); a("s_lshl_b32 s38, s38, 13"); a("s_add_u32 s36, s36, s38"); a("s_xor_b32 s37, s36, 8192")
a("s_barrier")
def kload(i):
    G, t, u = i >> 3, (i >> 1) & 3, i & 1
    a("buffer_load_dwordx4 %s, v1, %s, s%d offen offset:%d%s" % (v4(KR + 4 * i), srd(SRD_KV), 36 + G, t * 512 + u * 256, POL))
for i in range(N1): kload(i)
stamp(1)
a("s_branch K_MAIN")

a("V_PROJ:")
tr_addrs()
a("s_mov_b32 s37, 0x3f803f80")
a("v_mov_b32 v6, 0"); a("v_mov_b32 v7, 0")
WF, DT, PB = 116, 180, 196
for r in [XF + 14, XF + 15] + [WF + 16 * tp + k for tp in range(4) for k in (14, 15)]: a("v_mov_b32 v%d, 0" % r)
for nn, val in ((sM1, 0x22222222), (sM2, 0x44444444), (sM3, 0x88888888)):
    a("s_mov_b32 s%d, 0x%x" % (nn, val)); a("s_mov_b32 s%d, 0x%x" % (nn + 1, val))
a("v_lshlrev_b32 v2, 6, v4"); a("v_lshl_add_u32 v2, v5, 4, v2")
a("v_lshl_add_u32 v1, v3, 9, v2")
a("v_lshl_add_u32 v2, v3, 8, v2")
a("v_lshrrev_b32 v80, 2, v0"); a("v_lshlrev_b32 v80, 6, v80"); a("v_lshl_add_u32 v80, v5, 3, v80")
a("v_and_b32 v81, 1, v4"); a("v_lshl_add_u32 v80, v81, 5, v80"); a("v_xor_b32 v81, 32, v80")
a("s_lshl_b32 s98, s39, 11"); a("s_add_u32 s98, s98, 0x%x" % QP)
a("s_lshl_b32 s99, s39, 10"); a("s_add_u32 s99, s99, 0x%x" % HP)
if int(opt["b1wait"]) < 63: a("s_waitcnt vmcnt(%d)" % int(opt["b1wait"]))
a("s_barrier")
stamp(1)
a("s_waitcnt vmcnt(26)")
for i in range(14):
    a("v_dot2c_f32_bf16 v6, s37, v%d" % (XS + i)); a("v_dot2c_f32_bf16 v7, v%d, v%d" % (XS + i, XS + i))
for x in (6, 7): dpp_red("v_add_f32", x, "quad_perm:[1,0,3,2]")
for x in (6, 7): dpp_red("v_add_f32", x, "quad_perm:[2,3,0,1]")
rows_allreduce("v_add_f32", (6, 7), (8, 9))
a("v_mul_f32 v6, 0x%x, v6" % f2u(1.0 / 448)); a("v_mul_f32 v7, 0x%x, v7" % f2u(1.0 / 448))
a("v_fma_f32 v7, -v6, v6, v7"); a("v_max_f32 v7, 0, v7")
bf16_round(7); a("v_add_f32 v7, 0x%x, v7" % f2u(1e-5)); bf16_round(7)
a("v_sqrt_f32 v7, v7"); bf16_round(6); bf16_round(7); a("v_rcp_f32 v7, v7")
a("s_waitcnt vmcnt(19)")
a("v_mul_f32 v6, v6, v7")
for i in range(14):
    r = XF + i; t = XS + 2 * (i & 1)
    a("v_lshlrev_b32 v%d, 16, v%d" % (t, r)); a("v_and_b32 v%d, 0xffff0000, v%d" % (t + 1, r))
    a("v_fma_f32 v%d, v%d, v7, -v6" % (t, t)); a("v_fma_f32 v%d, v%d, v7, -v6" % (t + 1, t + 1))
    a("v_cvt_pk_bf16_f32 v%d, v%d, v%d" % (r, t, t + 1))
make_tag()
a("s_xor_b32 s%d, s%d, s%d" % (sTGX, sTAG, sXCC))
for i in (1, 5, 9): a("v_mov_b32 v%d, s%d" % (PB + i, sTAG))
for i in (3, 7, 11): a("v_mov_b32 v%d, s%d" % (PB + i, sTGX))
stamp(2)
a("s_waitcnt vmcnt(7)")
stamp(3)
def proj_mfma(q, d):
    for u in range(4): a("%s %s, %s, %s, %s" % (MF, v4(d), v4(WF + 16 * q + 4 * u), v4(XF + 4 * u), "0" if u == 0 else v4(d)))
for tp in range(4):
    for m in range(7): a("ds_read_b64_tr_b16 %s, v%d offset:%d" % (v2(WF + 16 * tp + 2 * m), 12 + tp, LT0 + 2048 * m))
    if tp >= 1:
        a("s_waitcnt lgkmcnt(7)"); proj_mfma(tp - 1, DT + 4 * (tp - 1))
a("s_waitcnt lgkmcnt(0)")
proj_mfma(3, DT + 12)
for r in range(4): a("v_cndmask_b32 v%d, v%d, v%d, %s" % (PB + 2 * r, DT + r, DT + 4 + r, sp(sM1)))
for r in range(4): a("v_cndmask_b32 v%d, v%d, v%d, %s" % (PB + 2 * r, PB + 2 * r, DT + 8 + r, sp(sM2)))
for r in range(4): a("v_cndmask_b32 v%d, v%d, v%d, %s" % (PB + 2 * r, PB + 2 * r, DT + 12 + r, sp(sM3)))
a("buffer_store_dwordx4 %s, v1, %s, s98 offen sc1" % (v4(PB), srd(SRD_WS)))
a("buffer_store_dwordx4 %s, v1, %s, s98 offen offset:256 sc1" % (v4(PB + 4), srd(SRD_WS)))
a("s_waitcnt vmcnt(2)")
for tp in range(2):
    for m in range(7): a("ds_read_b64_tr_b16 %s, v%d offset:%d" % (v2(WF + 16 * tp + 2 * m), 80 + tp, LT1 + 1024 * m))
a("s_waitcnt lgkmcnt(7)"); proj_mfma(0, DT)
a("s_waitcnt lgkmcnt(0)"); proj_mfma(1, DT + 4)
for k in range(2):
    a("v_cndmask_b32 v%d, v%d, v%d, %s" % (PB + 8 + 2 * k, DT + k, DT + 2 + k, sp(sM2)))
for k in range(2):
    a("v_cndmask_b32 v%d, v%d, v%d, %s" % (PB + 8 + 2 * k, PB + 8 + 2 * k, DT + 4 + k, sp(sM1)))
for k in range(2):
    a("v_cndmask_b32 v%d, v%d, v%d, %s" % (PB + 8 + 2 * k, PB + 8 + 2 * k, DT + 6 + k, sp(sM3)))
a("buffer_store_dwordx4 %s, v2, %s, s99 offen sc1" % (v4(PB + 8), srd(SRD_WS)))
a("s_setprio 0")
a("V_B2:")
stamp(4)
a("s_barrier")
VR, VF, DV = 16, 80, 144
a("v_lshlrev_b32 v1, 12, v11"); a("v_and_b32 v6, 7, v0"); a("v_lshl_add_u32 v1, v6, 4, v1")
a("s_lshl_b32 s37, s%d, 7" % sWAVE); a("s_add_u32 s36, s36, s37"); a("s_add_u32 s37, s36, 32768")
a("s_mov_b32 s98, 0x05040100"); a("s_mov_b32 s99, 0x07060302")
a("v_bfe_u32 v6, v0, 2, 1"); a("v_lshlrev_b32 v8, 9, v6"); a("v_lshl_add_u32 v8, v4, 6, v8")
a("v_and_b32 v7, 1, v0"); a("v_lshl_add_u32 v8, v7, 5, v8"); a("v_lshlrev_b32 v6, 9, v6")
SS, PFR, STT, TT, OO = 176, 192, 200, 204, 208
a("s_lshl_b32 s95, s%d, 10" % sX8); a("s_lshl_b32 s96, s%d, 4" % sR); a("s_add_u32 s95, s95, s96"); a("s_add_u32 s95, s95, 0x%x" % (RA + STO))
a("s_lshl_b32 s96, s%d, 16" % sX8); a("s_lshl_b32 s97, s%d, 13" % sWAVE); a("s_add_u32 s96, s96, s97")
a("s_lshr_b32 s97, s%d, 2" % sS); a("s_lshl_b32 s97, s97, 11"); a("s_add_u32 s96, s96, s97")
a("s_lshl_b32 s97, s%d, 6" % sB); a("s_add_u32 s96, s96, s97"); a("s_and_b32 s97, s%d, 3" % sS); a("s_lshl_b32 s97, s97, 4"); a("s_add_u32 s96, s96, s97")
a("s_add_u32 s96, s96, 0x%x" % RA)
a("v_bfe_u32 v9, v0, 4, 1"); a("v_lshlrev_b32 v9, 15, v9"); a("v_lshl_add_u32 v9, v7, 9, v9")
a("v_bfe_u32 v7, v0, 2, 1"); a("v_lshl_add_u32 v9, v7, 12, v9"); a("v_bfe_u32 v7, v0, 1, 1"); a("v_lshl_add_u32 v9, v7, 10, v9")
a("v_bfe_u32 v7, v0, 3, 1"); a("v_lshl_add_u32 v7, v7, 8, v9")
a("v_mov_b32 v2, 0")
a("s_mov_b32 s100, 0x%x" % f2u(LOG2E / 16))
if opt["b2b"] == "1": a("s_barrier")
stamp(5)
for i in range(16):
    a("buffer_load_dwordx4 %s, v1, %s, s%d offen offset:%d%s" % (v4(VR + 4 * i), srd(SRD_KV), 36 + (i >> 3), 512 * (i & 7), POL))
for r in (STT + 1, STT + 3, OO + 1, OO + 3): a("v_mov_b32 v%d, s%d" % (r, sTAG))
a("s_bitcmp1_b32 s%d, 0" % sWAVE); a("s_cselect_b32 s92, 16, 1"); a("s_mov_b32 s93, 0")
stamp(6)
a("s_barrier")
stamp(7)
def vperm(pair):
    G, i = pair >> 2, pair & 3
    for m in range(4):
        A = VR + 4 * (2 * pair) + m; B = A + 4
        a("v_perm_b32 v%d, v%d, v%d, s98" % (VF + 32 * G + 4 * (2 * m) + i, B, A))
        a("v_perm_b32 v%d, v%d, v%d, s99" % (VF + 32 * G + 4 * (2 * m + 1) + i, B, A))
for k, off in enumerate((0, 16, 256, 272)): a("ds_read_b128 %s, v8 offset:%d" % (v4(SS + 4 * k), LS + off))
a("ds_read_b128 %s, v2 offset:%d" % (v4(TT), LFLAG))
a("s_waitcnt lgkmcnt(0)")
a("v_min3_u32 v2, v%d, v%d, v%d" % (TT, TT + 1, TT + 2)); a("v_min_u32 v2, v2, v%d" % (TT + 3))
a("v_readfirstlane_b32 s101, v2")
a("v_max3_f32 v8, v%d, v%d, v%d" % (SS, SS + 1, SS + 2)); a("v_max3_f32 v9, v%d, v%d, v%d" % (SS + 3, SS + 4, SS + 5))
a("v_max3_f32 v8, v8, v%d, v%d" % (SS + 6, SS + 7)); a("v_max3_f32 v9, v9, v%d, v%d" % (SS + 8, SS + 9))
a("v_max3_f32 v8, v8, v%d, v%d" % (SS + 10, SS + 11)); a("v_max3_f32 v9, v9, v%d, v%d" % (SS + 12, SS + 13))
a("v_max3_f32 v8, v8, v%d, v%d" % (SS + 14, SS + 15)); a("v_max_f32 v8, v8, v9")
dpp_red("v_max_f32", 8, "quad_perm:[1,0,3,2]")
rows_allreduce("v_max_f32", (8,), (9,))
a("v_mul_f32 v%d, s100, v8" % STT)
for k in range(16): a("v_fma_f32 v%d, v%d, s100, -v%d" % (SS + k, SS + k, STT))
for k in range(16): a("v_exp_f32 v%d, v%d" % (SS + k, SS + k))
for k in range(8): a("v_cvt_pk_bf16_f32 v%d, v%d, v%d" % (PFR + k, SS + 2 * k, SS + 2 * k + 1))
for k in range(8): a("v_add_f32 v%d, v%d, v%d" % (SS + k, SS + k, SS + 8 + k))
for k in range(4): a("v_add_f32 v%d, v%d, v%d" % (SS + k, SS + k, SS + 4 + k))
a("v_add_f32 v%d, v%d, v%d" % (SS, SS, SS + 2)); a("v_add_f32 v%d, v%d, v%d" % (SS + 1, SS + 1, SS + 3))
a("v_add_f32 v%d, v%d, v%d" % (STT + 2, SS, SS + 1))
dpp_red("v_add_f32", STT + 2, "quad_perm:[1,0,3,2]")
rows_allreduce("v_add_f32", (STT + 2,), (9,))
def pv_mfma(G):
    for j in range(8): a("%s %s, %s, %s, %s" % (MF, v4(DV + 4 * j), v4(PFR + 4 * G), v4(VF + 32 * G + 4 * j), "0" if G == 0 else v4(DV + 4 * j)))
for p in range(8):
    a("s_waitcnt vmcnt(%d)" % (16 - 2 * (p + 1))); vperm(p)
    if p == 3: pv_mfma(0)
stamp(8)
pv_mfma(1)
a("s_cmp_eq_u32 s101, %d" % (2 if opt["local"] == "1" else 3))
a("s_cbranch_scc0 V_REMOTE")
a("s_mov_b64 exec, s[92:93]")
a("buffer_store_dwordx4 %s, v6, %s, s95 offen" % (v4(STT), srd(SRD_WS)))
a("s_mov_b64 exec, -1")
def o_epilogue():
    for j in range(4): a("v_add_f32_dpp v%d, v%d, v%d row_ror:8 row_mask:0xf bank_mask:0x3" % (TT + j, DV + 4 * j + 1, DV + 4 * j))
    for j in range(4, 8): a("v_add_f32_dpp v%d, v%d, v%d row_ror:8 row_mask:0xf bank_mask:0xc" % (TT + j - 4, DV + 4 * j, DV + 4 * j + 1))
    a("v_cvt_pk_bf16_f32 v%d, v%d, v%d" % (OO, TT, TT + 1)); a("v_cvt_pk_bf16_f32 v%d, v%d, v%d" % (OO + 2, TT + 2, TT + 3))
    a("s_mov_b32 exec_hi, 0")
o_epilogue()
a("buffer_store_dwordx4 %s, v7, %s, s96 offen" % (v4(OO), srd(SRD_WS)))
a("V_PUB:")
a("s_mov_b64 exec, -1")
stamp(9)
a("s_cmp_ge_u32 s%d, 28" % sR)
a("s_cbranch_scc1 FINISH")
a("s_barrier")
a("s_cmp_eq_u32 s%d, 0" % sWAVE)
a("s_cbranch_scc1 REDUCER")
a("s_barrier")
a("s_branch FINISH")
a("REDUCER:")
a("s_lshr_b32 s94, s2, 5"); a("s_and_b32 s95, s2, 31")
a("s_mov_b64 %s, %s" % (sp(SRD_O), sp(pOUT)))
a("s_bfe_u32 s96, s2, 0x20002"); a("s_mul_i32 s96, s96, 896"); a("s_lshl_b32 s97, s94, 7"); a("s_add_u32 s96, s96, s97")
a("s_bfe_u32 s97, s2, 0x10004"); a("s_lshl_b32 s97, s97, 6"); a("s_add_u32 s96, s96, s97")
a("s_and_b32 s97, s2, 3"); a("s_lshl_b32 s97, s97, 3"); a("s_add_u32 s96, s96, s97")
a("v_lshlrev_b32 v6, 1, v5")
a("buffer_load_ushort v16, v6, %s, s96 offen" % srd(SRD_X)); a("buffer_load_ushort v17, v6, %s, s96 offen offset:32" % srd(SRD_X))
a("v_lshrrev_b32 v7, 2, v0"); a("v_lshlrev_b32 v7, 11, v7"); a("v_lshl_add_u32 v7, v5, 4, v7")
a("s_lshl_b32 s97, s94, 16"); a("s_lshl_b32 s98, s95, 6"); a("s_add_u32 s97, s97, s98"); a("s_add_u32 s97, s97, 0x%x" % FP); a("s_add_u32 s98, s97, 32768")
a("s_barrier")
def issue_r(st=0):
    for y in range(2): a("buffer_load_dwordx4 %s, v7, %s, s%d offen%s" % (v4(20 + 8 * st + 4 * y), srd(SRD_WS), 97 + y, RPOL))
RS = int(opt["rslp"])
if opt["rpipe"] == "1":
    NS = 3
    for st in range(NS - 1):
        issue_r(st)
        if RS: a("s_sleep %d" % RS)
    a("PR:")
    for st in range(NS):
        issue_r((st + NS - 1) % NS)
        a("s_waitcnt vmcnt(%d)" % (2 * (NS - 1)))
        check_tags([21 + 8 * st, 23 + 8 * st, 25 + 8 * st, 27 + 8 * st])
        a("v_add_f32 v18, v%d, v%d" % (20 + 8 * st, 24 + 8 * st)); a("v_add_f32 v19, v%d, v%d" % (22 + 8 * st, 26 + 8 * st))
        a("s_cbranch_scc1 PR_ok")
        if RS: a("s_sleep %d" % RS)
    a("s_sub_u32 s%d, s%d, 1" % (sSPIN, sSPIN))
    a("s_cbranch_scc0 PR")
    a("PR_ok:")
else:
    issue_r(); a("s_waitcnt vmcnt(0)")
    poll_check("PR", issue_r, [21, 23, 25, 27], sleep=RS)
    a("v_add_f32 v18, v20, v24"); a("v_add_f32 v19, v22, v26")
stamp(10)
a("v_lshlrev_b32 v16, 16, v16"); a("v_lshlrev_b32 v17, 16, v17")
a("s_nop 0")
for x in (18, 19): dpp_red("v_add_f32", x, "row_ror:4")
for x in (18, 19): dpp_red("v_add_f32", x, "row_ror:8")
rows_allreduce("v_add_f32", (18, 19), (8, 9))
a("v_add_f32 v18, v18, v16"); a("v_add_f32 v19, v19, v17")
a("v_cvt_pk_bf16_f32 v18, v18, v19")
a("s_mov_b64 exec, 0xf")
a("buffer_store_short v18, v6, %s, s96 offen" % srd(SRD_O))
a("buffer_store_short_d16_hi v18, v6, %s, s96 offen offset:32" % srd(SRD_O))
a("s_mov_b64 exec, -1")
a("s_cmp_lg_u32 s2, 0")
a("s_cbranch_scc1 FINISH")
a("v_mov_b32 v8, s%d" % sTAG); a("v_mov_b32 v9, 0")
a("s_mov_b64 exec, 1")
a("buffer_store_dword v8, v9, %s, 0 offen sc1" % srd(SRD_WS))
a("s_mov_b64 exec, -1")
a("s_branch FINISH")

a("K_MAIN:")
a("s_and_b32 s88, s%d, 3" % sR); a("s_lshr_b32 s89, s%d, 2" % sR)
a("s_mov_b64 %s, %s" % (sp(SRD_T), sp(pWO))); a("s_mov_b64 %s, %s" % (sp(SRD_W2), sp(pW2))); a("s_mov_b64 %s, %s" % (sp(SRD_O), sp(pB1)))
a("s_lshl_b32 s92, s%d, 12" % sWAVE)
a("s_lshl_b32 s90, s%d, 2" % sWAVE); a("s_add_u32 s90, s90, s88")
a("s_mul_i32 s91, s%d, 7" % sX8); a("s_add_u32 s91, s91, s90")
a("s_cmp_ge_u32 s%d, 28" % sR); a("s_cselect_b32 s90, 7, s90")
a("s_lshl_b32 s64, s%d, 4" % sX8); a("s_lshl_b32 s97, s88, 2"); a("s_add_u32 s64, s64, s97"); a("s_add_u32 s64, s64, s%d" % sWAVE)
a("s_mul_i32 s64, s64, %d" % (32 * 896)); a("s_lshl_b32 s97, s89, 7"); a("s_add_u32 s64, s64, s97")
a("s_mul_i32 s65, s91, %d" % (32 * 896)); a("s_add_u32 s65, s65, s97")
a("s_lshl_b32 s94, s%d, 16" % sX8); a("s_add_u32 s94, s94, s92")
a("s_lshl_b32 s95, s%d, 9" % sB); a("s_add_u32 s94, s94, s95"); a("s_add_u32 s94, s94, 0x%x" % QP)
for k in range(1, 4): a("s_add_u32 s%d, s94, %d" % (94 + k, 16384 * k))
a("s_lshl_b32 s66, s%d, 5" % sX8); a("s_add_u32 s66, s66, s90"); a("s_lshl_b32 s66, s66, 10"); a("s_add_u32 s66, s66, 0x%x" % HP)
a("s_lshl_b32 s67, s91, 6")
a("s_lshl_b32 s68, s%d, 1" % sX8); a("s_lshr_b32 s99, s88, 1"); a("s_add_u32 s68, s68, s99"); a("s_lshl_b32 s68, s68, 9"); a("s_add_u32 s68, s68, 0x%x" % (RA + STO))
a("s_lshl_b32 s69, s%d, 16" % sX8); a("s_lshl_b32 s99, s88, 14"); a("s_add_u32 s69, s69, s99"); a("s_add_u32 s69, s69, s92"); a("s_add_u32 s69, s69, 0x%x" % RA)
for k in range(1, 4): a("s_add_u32 s%d, s66, %d" % (72 + k, 8192 * k))
a("s_lshl_b32 s71, s89, 5"); a("s_lshl_b32 s99, s%d, 2" % sX8); a("s_add_u32 s71, s71, s99"); a("s_add_u32 s71, s71, s88")
a("s_lshl_b32 s71, s71, 1"); a("s_add_u32 s71, s71, s%d" % sWAVE); a("s_lshl_b32 s71, s71, 10"); a("s_add_u32 s71, s71, 0x%x" % FP)
tr_addrs()
for tp in range(4): a("v_add_u32 v%d, s92, v%d" % (12 + tp, 12 + tp))
vWD, vQG, vQW, vQR, vSW, vBI, vHG, vST, vOG, vRW, vRR, vL16, vFL, vZ = 184, 185, 186, 187, 188, 189, 190, 191, 192, 193, 194, 195, 196, 197
a("v_mul_u32_u24 v%d, 896, v11" % vWD); a("v_add_u32 v%d, v%d, v10" % (vWD, vWD))
a("v_lshrrev_b32 v7, 5, v0"); a("v_bfe_u32 v9, v0, 4, 1")
a("v_lshlrev_b32 v6, 11, v7"); a("v_and_b32 v8, 31, v0"); a("v_lshl_add_u32 v%d, v8, 4, v6" % vQG)
a("v_lshlrev_b32 v6, 7, v7"); a("v_lshl_add_u32 v6, v5, 5, v6"); a("v_lshl_add_u32 v6, v3, 3, v6"); a("v_lshl_add_u32 v6, v9, 2, v6")
a("s_lshl_b32 s98, s%d, 8" % sWAVE); a("v_add_u32 v%d, s98, v6" % vQW)
a("v_bfe_u32 v6, v0, 2, 1"); a("v_lshlrev_b32 v6, 9, v6"); a("v_lshl_add_u32 v6, v4, 6, v6"); a("v_lshl_add_u32 v%d, v5, 4, v6" % vQR)
a("v_lshlrev_b32 v6, 9, v9"); a("v_lshl_add_u32 v6, v3, 4, v6"); a("s_lshl_b32 s98, s%d, 7" % sWAVE); a("s_lshr_b32 s99, s38, 7"); a("s_add_u32 s98, s98, s99")
a("v_add_u32 v%d, s98, v6" % vSW); a("v_xor_b32 v198, 64, v%d" % vSW)
a("v_and_b32 v6, 1, v0"); a("v_lshlrev_b32 v6, 5, v6"); a("v_lshl_add_u32 v6, v4, 3, v6"); a("v_bfe_u32 v8, v0, 1, 1"); a("v_lshl_add_u32 v%d, v8, 2, v6" % vBI)
a("v_lshlrev_b32 v6, 4, v5"); a("v_lshl_add_u32 v6, v3, 8, v6"); a("v_lshl_add_u32 v%d, v4, 6, v6" % vHG)
a("v_and_b32 v6, 7, v0"); a("v_lshl_add_u32 v6, v4, 3, v6"); a("v_lshlrev_b32 v%d, 4, v6" % vST)
a("v_lshlrev_b32 v%d, 4, v0" % vL16)
a("s_lshl_b32 s98, s%d, 10" % sWAVE); a("v_add_u32 v%d, s98, v%d" % (vRW, vL16))
a("s_lshl_b32 s98, s%d, 3" % sWAVE); a("v_add_u32 v%d, s98, v%d" % (vRR, vL16))
a("s_lshl_b32 s98, s%d, 2" % sWAVE); a("v_mov_b32 v%d, s98" % vFL); a("v_mov_b32 v%d, 0" % vZ)
ACC, PO = 156, 160
for i in range(4): a("v_mov_b32 v%d, 0" % (ACC + i))
make_tag()
a("v_mov_b32 v%d, s%d" % (PO + 1, sTAG)); a("v_mov_b32 v%d, s%d" % (PO + 3, sTAG))
QG, HB, HG, SG, OG = 84, 164, 168, 200, 100
def issue_q():
    for k in range(4): a("buffer_load_dwordx4 %s, v%d, %s, s%d offen sc1" % (v4(QG + 4 * k), vQG, srd(SRD_WS), 94 + k))
def issue_h():
    for k, so in enumerate((66, 73, 74, 75)): a("buffer_load_dwordx4 %s, v%d, %s, s%d offen sc1" % (v4(HG + 4 * k), vHG, srd(SRD_WS), so))
def issue_o():
    for hf in range(2):
        for z in range(2): a("buffer_load_dwordx4 %s, v%d, %s, s69 offen offset:%d sc1" % (v4(OG + 8 * hf + 4 * z), vL16, srd(SRD_WS), 2048 * hf + 1024 * z))
    a("buffer_load_dwordx4 %s, v%d, %s, s68 offen sc1" % (v4(SG), vST, srd(SRD_WS)))
def wdma(s, so):
    for t in range(4):
        a("buffer_load_dwordx4 v%d, %s, s%d offen%s lds" % (vWD, srd(s), so, POL))
        if t < 3: a("s_add_u32 m0, m0, 1024"); a("s_add_u32 s%d, s%d, %d" % (so, so, 8 * 896))
def issue_w(lbl):
    a("s_add_u32 m0, s92, %d" % LW)
    wdma(SRD_T, 64)
    a("s_cmp_ge_u32 s90, 7"); a("s_cbranch_scc1 %s" % lbl)
    a("s_add_u32 m0, s92, %d" % LW2)
    wdma(SRD_W2, 65)
    a("%s:" % lbl)
stamp(2)
a("s_barrier")
for i in range(N1, 16): kload(i)
a("s_cmp_ge_u32 s%d, 28" % sR); a("s_cbranch_scc1 K_NOH")
if WFIRST: issue_w("K_W1")
a("s_cmp_ge_u32 s90, 7"); a("s_cbranch_scc1 K_NOH")
a("buffer_load_dword v%d, v%d, %s, s67 offen" % (HB, vBI, srd(SRD_O)))
issue_h()
a("K_NOH:")
issue_q()
stamp(3)
if opt["b2b"] == "1": a("s_barrier")
a("s_waitcnt vmcnt(0)")
poll_check("PQ", issue_q, [QG + 4 * k + 1 for k in range(4)], [QG + 4 * k + 3 for k in range(4)], sleep=SLP)
stamp(4)
a("v_add_f32 v%d, v%d, v%d" % (QG, QG, QG + 4)); a("v_add_f32 v%d, v%d, v%d" % (QG + 2, QG + 2, QG + 6))
a("v_add_f32 v%d, v%d, v%d" % (QG + 8, QG + 8, QG + 12)); a("v_add_f32 v%d, v%d, v%d" % (QG + 10, QG + 10, QG + 14))
a("v_add_f32 v%d, v%d, v%d" % (QG, QG, QG + 8)); a("v_add_f32 v%d, v%d, v%d" % (QG + 2, QG + 2, QG + 10))
a("v_cvt_pk_bf16_f32 v%d, v%d, v%d" % (QG, QG, QG + 2))
a("ds_write_b32 v%d, v%d offset:%d" % (vQW, QG, LQ))
for k in range(4): a("v_cmpx_eq_u32 vcc, s%d, v%d" % (sXCC, QG + 4 * k + 3))
a("s_cmp_eq_u64 exec, -1"); a("s_mov_b64 exec, -1"); a("s_cselect_b32 s98, 2, 1")
a("v_mov_b32 v82, s98")
a("s_waitcnt lgkmcnt(0)")
a("ds_write_b32 v%d, v82 offset:%d" % (vFL, LFLAG))
a("s_mov_b32 s99, %d" % (SPIN * 16))
a("PF:")
a("ds_read_b128 %s, v%d offset:%d" % (v4(QG + 4), vZ, LFLAG))
a("s_waitcnt lgkmcnt(0)")
a("v_min3_u32 v82, v%d, v%d, v%d" % (QG + 4, QG + 5, QG + 6)); a("v_min_u32 v82, v82, v%d" % (QG + 7))
a("v_readfirstlane_b32 s101, v82")
a("s_cmp_lg_u32 s101, 0")
a("s_cbranch_scc1 PF_ok")
a("s_sub_u32 s99, s99, 1")
a("s_cbranch_scc0 PF")
a("PF_ok:")
QF = 92
a("ds_read_b128 %s, v%d offset:%d" % (v4(QF), vQR, LQ)); a("ds_read_b128 %s, v%d offset:%d" % (v4(QF + 4), vQR, LQ + 256))
DQ, SC = 116, 148
a("s_waitcnt lgkmcnt(0)")
for t in range(8): a("%s %s, %s, %s, 0" % (MF, v4(DQ + 4 * t), v4(QF), v4(KR + 8 * t)))
for t in range(8): a("%s %s, %s, %s, %s" % (MF, v4(DQ + 4 * t), v4(QF + 4), v4(KR + 8 * t + 4), v4(DQ + 4 * t)))
for r in range(4):
    for t in range(8):
        qp = "quad_perm:[%d,%d,%d,%d]" % (r, r, r, r)
        if r == 0: a("v_mov_b32_dpp v%d, v%d %s%s" % (SC + t, DQ + 4 * t, qp, DPPM))
        else: a("v_add_f32_dpp v%d, v%d, v%d %s%s" % (SC + t, DQ + 4 * t + r, SC + t, qp, DPPM))
a("ds_write_b128 v%d, %s offset:%d" % (vSW, v4(SC), LS)); a("ds_write_b128 v198, %s offset:%d" % (v4(SC + 4), LS))
a("s_cmp_eq_u32 s101, %d" % (2 if opt["local"] == "1" else 3)); a("s_cselect_b32 s98, 0, 0x%x" % (RB - RA))
for r in (68, 69): a("s_add_u32 s%d, s%d, s98" % (r, r))
a("s_waitcnt lgkmcnt(0)")
stamp(5)
a("s_barrier")
stamp(6)
a("s_cmp_ge_u32 s%d, 28" % sR)
a("s_cbranch_scc1 KFINISH")
if not WFIRST: issue_w("K_W2")
a("s_cmp_ge_u32 s90, 7")
a("s_cbranch_scc1 NOMLP1")
poll_check("PH", issue_h, [HG + 4 * k + 1 for k in range(4)], [HG + 4 * k + 3 for k in range(4)], sleep=SLP)
hv = [HG, HG + 2]
for x in hv:
    a("v_add_f32 v%d, v%d, v%d" % (x, x, x + 4)); a("v_add_f32 v%d, v%d, v%d" % (x + 8, x + 8, x + 12))
a("v_lshlrev_b32 v%d, 16, v%d" % (HG + 1, HB)); a("v_and_b32 v%d, 0xffff0000, v%d" % (HG + 3, HB))
for x in hv: a("v_add_f32 v%d, v%d, v%d" % (x, x, x + 8))
for x in hv: a("v_add_f32 v%d, v%d, v%d" % (x, x, x + 1))
a("s_mov_b32 s96, 0x%x" % f2u(-LOG2E))
T1, T2 = 16, 24
for k, x in enumerate(hv): a("v_mul_f32 v%d, s96, |v%d|" % (x + 1, x))
for k, x in enumerate(hv): a("v_exp_f32 v%d, v%d" % (x + 1, x + 1))
for k, x in enumerate(hv):
    a("v_cmp_lt_f32 vcc, 0, v%d" % x)
    a("v_mul_f32 v%d, v%d, v%d" % (T1 + k, x + 1, x + 1))
    a("v_cndmask_b32 v%d, 1.0, v%d, vcc" % (T2 + k, T1 + k))
    a("v_cndmask_b32_e64 v%d, v%d, 1.0, vcc" % (T1 + k, T1 + k))
    a("v_fma_f32 v%d, v%d, 2.0, v%d" % (T1 + k, x + 1, T1 + k))
    a("v_fma_f32 v%d, v%d, 2.0, v%d" % (T2 + k, T2 + k, T1 + k))
for k, x in enumerate(hv): a("v_rcp_f32 v%d, v%d" % (T2 + k, T2 + k))
for k, x in enumerate(hv): a("v_mul_f32 v%d, v%d, v%d" % (x, x, T1 + k))
for k, x in enumerate(hv): a("v_mul_f32 v%d, v%d, v%d" % (x, x, T2 + k))
AF = 80
a("v_cvt_pk_bf16_f32 v%d, v%d, v%d" % (HG, HG, HG + 2))
for k, src in enumerate((0, 2, 1, 3)): a("v_mov_b32_dpp v%d, v%d quad_perm:[%d,%d,%d,%d]%s" % (AF + k, HG, src, src, src, src, DPPM))
a("NOMLP1:")
WOF, W2F, DM, DO = 116, 132, 48, 16
def wfrags(lbl):
    for tp in range(4):
        for m in range(2): a("ds_read_b64_tr_b16 %s, v%d offset:%d" % (v2(WOF + 4 * tp + 2 * m), 12 + tp, LW + 2048 * m))
    a("s_cmp_ge_u32 s90, 7"); a("s_cbranch_scc1 %s" % lbl)
    for tp in range(4):
        for m in range(2): a("ds_read_b64_tr_b16 %s, v%d offset:%d" % (v2(W2F + 4 * tp + 2 * m), 12 + tp, LW2 + 2048 * m))
    a("s_waitcnt lgkmcnt(0)")
    for tp in range(4): a("%s %s, %s, %s, 0" % (MF, v4(DM + 4 * tp), v4(AF), v4(W2F + 4 * tp)))
    for tp in range(4): a("v_mov_b32 v%d, v%d" % (ACC + tp, DM + 4 * tp))
    a("%s:" % lbl)
if WFIRST: wfrags("NOMLP2")
stamp(7)
a("s_barrier")
stamp(8)
issue_o()
if not WFIRST:
    a("s_waitcnt vmcnt(5)")
    wfrags("NOMLP2")
a("s_waitcnt vmcnt(0)")
poll_check("PO", issue_o, [OG + 4 * k + j for k in range(4) for j in (1, 3)] + [SG + 1, SG + 3])
stamp(9)
for hf in range(2):
    o = OG + 8 * hf
    a("v_mov_b32 v%d, v%d" % (o + 1, o + 2)); a("v_mov_b32 v%d, v%d" % (o + 2, o + 4)); a("v_mov_b32 v%d, v%d" % (o + 3, o + 6))
a("v_mov_b32 v%d, v%d" % (SG + 1, SG))
a("s_waitcnt lgkmcnt(0)")
fops = [lambda: dpp_red("v_max_f32", SG + 1, "quad_perm:[1,0,3,2]"), lambda: dpp_red("v_max_f32", SG + 1, "quad_perm:[2,3,0,1]"),
        lambda: dpp_red("v_max_f32", SG + 1, "row_half_mirror"),
        lambda: (a("v_sub_f32 v%d, v%d, v%d" % (SG, SG, SG + 1)), a("v_exp_f32 v%d, v%d" % (SG, SG))),
        lambda: a("v_mul_f32 v%d, v%d, v%d" % (SG + 2, SG + 2, SG)),
        lambda: dpp_red("v_add_f32", SG + 2, "quad_perm:[1,0,3,2]"), lambda: dpp_red("v_add_f32", SG + 2, "quad_perm:[2,3,0,1]"),
        lambda: dpp_red("v_add_f32", SG + 2, "row_half_mirror")]
k = 0
for hf in range(2):
    for tp in range(4):
        a("%s %s, %s, %s, 0" % (MF, v4(DO + 16 * hf + 4 * tp), v4(OG + 8 * hf), v4(WOF + 4 * tp)))
        fops[k](); k += 1
a("v_rcp_f32 v%d, v%d" % (SG + 2, SG + 2)); a("v_mul_f32 v%d, v%d, v%d" % (SG, SG, SG + 2))
for hf in range(2):
    for r in range(4):
        for tp in range(4):
            a("v_fmac_f32_dpp v%d, v%d, v%d row_newbcast:%d%s" % (ACC + tp, SG, DO + 16 * hf + 4 * tp + r, 4 * hf + r, DPPM))
a("ds_write_b128 v%d, %s offset:%d" % (vRW, v4(ACC), LRED))
a("s_waitcnt lgkmcnt(0)")
a("s_barrier")
a("s_cmp_ge_u32 s%d, 2" % sWAVE)
a("s_cbranch_scc1 KFINISH")
for u in range(4): a("ds_read_b64 %s, v%d offset:%d" % (v2(16 + 2 * u), vRR, LRED + 1024 * u))
a("s_waitcnt lgkmcnt(0)")
a("v_add_f32 v16, v16, v18"); a("v_add_f32 v17, v17, v19"); a("v_add_f32 v20, v20, v22"); a("v_add_f32 v21, v21, v23")
a("v_add_f32 v%d, v16, v20" % PO); a("v_add_f32 v%d, v17, v21" % (PO + 2))
a("buffer_store_dwordx4 %s, v%d, %s, s71 offen%s" % (v4(PO), vL16, srd(SRD_WS), RPOL))
stamp(10)
a("KFINISH:")
if STAMPS: a("s_add_u32 s%d, s%d, 4" % (sWAVE, sWAVE))
a("FINISH:")
if STAMPS:
    a("s_waitcnt vmcnt(0)")
    stamp(11)
    a("s_lshl_b32 s94, s2, 3"); a("s_add_u32 s94, s94, s%d" % sWAVE); a("s_lshl_b32 s94, s94, 7"); a("s_add_u32 s94, s94, 0x%x" % STAMP_OFF)
    a("v_mov_b32 v1, 0")
    a("s_mov_b64 exec, 1")
    for i in range(12):
        a("v_mov_b32 v4, s%d" % (40 + 2 * i)); a("v_mov_b32 v5, s%d" % (41 + 2 * i))
        a("buffer_store_dwordx2 v[4:5], v1, %s, s94 offen offset:%d" % (srd(SRD_WS), 8 * i))
        a("s_nop 1")
a("EXIT:")
a("s_endpgm")
emit_retries()
a("V_REMOTE:")
a("s_add_u32 s95, s95, 0x%x" % (RB - RA)); a("s_add_u32 s96, s96, 0x%x" % (RB - RA))
a("s_mov_b64 exec, s[92:93]")
a("buffer_store_dwordx4 %s, v6, %s, s95 offen sc1" % (v4(STT), srd(SRD_WS)))
a("s_mov_b64 exec, -1")
a("s_nop 7")
o_epilogue()
a("buffer_store_dwordx4 %s, v7, %s, s96 offen sc1" % (v4(OO), srd(SRD_WS)))
a("s_branch V_PUB")
lines = hazard.fix(a.lines)
body = "\n".join(lines) + "\n"
body += ".fill 2600, 4, 0xbf810000\n"
open(sys.argv[1], "w").write(wrap(body, 256, 512, LDS_BYTES, vgpr=216))
```

```python
import sys, math, struct
from asmlib import *
import hazard
opt = dict(stamps="0", pol="nt", local="1", spin="20000", n1="6", b1wait="63", wfirst="0", warm="1", slp="1", rpol="sc1", rpipe="0", rslp="1", b2b="0", hold="0", holdx="-1")
for x in sys.argv[2:]:
    k, v = x.split("="); opt[k] = v
POL = {"nt": " nt", "none": "", "sc1nt": " sc1 nt"}[opt["pol"]]
RPOL = {"sc1": " sc1", "sys": " sc0 sc1"}[opt["rpol"]]
STAMPS = int(opt["stamps"]); SPIN = int(opt["spin"]); N1 = int(opt["n1"]); WFIRST = int(opt["wfirst"]); SLP = int(opt["slp"])

QP, HP, RA, RB, STO, FP = 0x10000, 0x90000, 0x100000, 0x200000, 0x80000, 0x300000
LT0, LT1, LW, LW2, LQ, LS, LRED, LFLAG = 0, 14336, 28672, 45056, 53248, 54272, 55296, 59392
LDS_BYTES = 98304
sWAVE, sX8, sR, sB, sS, sTAG, sSPIN, sXCC, sTGX = 3, 28, 29, 30, 31, 32, 33, 34, 35
SRD_X, SRD_KV, SRD_T, SRD_W2, SRD_WS, SRD_O = 4, 8, 12, 16, 20, 24
pX, pK, pV, pWQ, pWO, pW1, pB1, pW2, pOUT, pWS = 64, 66, 68, 70, 72, 76, 78, 80, 82, 86
sM1, sM2, sM3 = 88, 90, 92
LOG2E = 1.4426950408889634
def f2u(f): return struct.unpack("<I", struct.pack("<f", f))[0]
def srd(n): return "s[%d:%d]" % (n, n + 3)
def sp(n): return "s[%d:%d]" % (n, n + 1)
def v4(n): return "v[%d:%d]" % (n, n + 3)
def v2(n): return "v[%d:%d]" % (n, n + 1)
DPPM = " row_mask:0xf bank_mask:0xf"
MF = "v_mfma_f32_16x16x32_bf16"

a = Asm()
def stamp(i):
    if STAMPS and i < 12:
        a("s_memrealtime s[%d:%d]" % (40 + 2 * i, 41 + 2 * i)); a("s_waitcnt lgkmcnt(0)")
def rows_allreduce(op, xs, ts):
    for sw in ("v_permlane16_swap_b32", "v_permlane32_swap_b32"):
        for x, t in zip(xs, ts): a("v_mov_b32 v%d, v%d" % (t, x))
        for x, t in zip(xs, ts): a("%s v%d, v%d" % (sw, x, t))
        for x, t in zip(xs, ts): a("%s v%d, v%d, v%d" % (op, x, x, t))
def dpp_red(op, x, ctrl): a("%s_dpp v%d, v%d, v%d %s%s" % (op, x, x, x, ctrl, DPPM))
def bf16_round(x):
    a("v_cvt_pk_bf16_f32 v%d, v%d, v%d" % (x, x, x)); a("v_lshlrev_b32 v%d, 16, v%d" % (x, x))
def check_tags(eq, xo=()):
    for t in eq: a("v_cmpx_eq_u32 vcc, s%d, v%d" % (sTAG, t))
    for t in xo:
        a("v_xor_b32 v%d, s%d, v%d" % (t, sTAG, t)); a("v_cmpx_gt_u32 vcc, 16, v%d" % t)
    a("s_cmp_eq_u64 exec, -1")
    a("s_mov_b64 exec, -1")
RETRY = []
def poll_check(name, issue, eq, xo=(), sleep=None):
    a("%s_chk:" % name)
    check_tags(eq, xo)
    a("s_cbranch_scc0 %s_retry" % name)
    a("%s_ok:" % name)
    a("s_nop 2")
    RETRY.append((name, issue, sleep))
def emit_retries():
    for name, issue, sleep in RETRY:
        a("%s_retry:" % name)
        a("s_cmp_eq_u32 s%d, 0" % sSPIN)
        a("s_cbranch_scc1 %s_ok" % name)
        a("s_sub_u32 s%d, s%d, 1" % (sSPIN, sSPIN))
        if sleep: a("s_sleep %d" % sleep)
        issue()
        a("s_waitcnt vmcnt(0)")
        a("s_branch %s_chk" % name)
def make_tag():
    a("s_waitcnt lgkmcnt(0)")
    a("s_mul_i32 s%d, s%d, 1664525" % (sTAG, sTAG)); a("s_add_u32 s%d, s%d, 1013904223" % (sTAG, sTAG))
def tr_addrs():
    a("v_lshrrev_b32 v12, 2, v0"); a("v_lshlrev_b32 v12, 7, v12"); a("v_lshl_add_u32 v12, v5, 3, v12")
    a("v_and_b32 v13, 3, v11"); a("v_lshl_add_u32 v12, v13, 5, v12")
    for tp in range(1, 4): a("v_xor_b32 v%d, %d, v12" % (12 + tp, 32 * tp))

a("s_cmp_ge_u32 s2, 256")
a("s_cbranch_scc1 EXIT")
if STAMPS or int(opt["hold"]): a("s_memrealtime s[40:41]")
a("s_load_dwordx16 s[64:79], s[0:1], 0")
a("s_load_dwordx8 s[80:87], s[0:1], 64")
a("s_getpc_b64 s[36:37]")
a("v_mul_u32_u24 v1, 20, v0")
a("global_load_dword v215, v1, s[36:37]")
a("v_lshrrev_b32 v1, 6, v0")
a("v_and_b32 v0, 63, v0")
a("v_readfirstlane_b32 s%d, v1" % sWAVE)
a("s_and_b32 s%d, s2, 7" % sX8)
a("s_lshr_b32 s%d, s2, 3" % sR)
a("s_lshr_b32 s%d, s2, 6" % sB)
a("s_bfe_u32 s%d, s2, 0x30003" % sS)
a("s_getreg_b32 s%d, hwreg(HW_REG_XCC_ID, 0, 4)" % sXCC)
a("s_mov_b32 s%d, %d" % (sSPIN, SPIN))
for n, size in ((SRD_X, 3584), (SRD_KV, 1 << 26), (SRD_T, 448 * 8192), (SRD_W2, 1792 * 896), (SRD_WS, 1 << 28), (SRD_O, 3584)):
    a("s_mov_b32 s%d, 0x%x" % (n + 2, size)); a("s_mov_b32 s%d, 0x20000" % (n + 3))
a("s_lshl_b32 s36, s%d, 3" % sB); a("s_add_u32 s36, s36, s%d" % sX8); a("s_lshl_b32 s36, s36, 21")
a("s_lshl_b32 s37, s%d, 16" % sS); a("s_add_u32 s36, s36, s37"); a("s_add_u32 s36, s36, %d" % (3072 * 512))
a("v_lshrrev_b32 v4, 4, v0"); a("v_and_b32 v5, 3, v0"); a("v_bfe_u32 v3, v0, 2, 2"); a("v_lshrrev_b32 v11, 3, v0")
a("v_lshlrev_b32 v10, 1, v4"); a("v_xor_b32 v10, v10, v0"); a("v_and_b32 v10, 7, v10"); a("v_lshlrev_b32 v10, 4, v10")
a("s_lshl_b32 s39, s%d, 5" % sX8); a("s_add_u32 s39, s39, s%d" % sR)
a("s_cmp_lg_u32 s%d, 0" % sWAVE)
a("s_cbranch_scc1 NOTW0")
XS, XF = 84, 100
a("s_setprio 3")
a("s_mul_i32 s98, s%d, %d" % (sB, 112 * 8192)); a("s_lshl_b32 s97, s%d, 10" % sX8); a("s_add_u32 s98, s98, s97")
a("s_lshl_b32 s97, s%d, 7" % sS); a("s_add_u32 s98, s98, s97")
a("s_mul_i32 s99, s%d, %d" % (sB, 112 * 3584)); a("s_mul_i32 s97, s%d, 448" % sX8); a("s_add_u32 s99, s99, s97")
a("s_lshl_b32 s97, s%d, 6" % sS); a("s_add_u32 s99, s99, s97")
a("s_cmp_eq_u32 s%d, 7" % sS); a("s_cselect_b32 s99, 0x40000000, s99")
a("v_mul_u32_u24 v6, 896, v3"); a("v_lshl_add_u32 v7, v4, 2, v5")
a("v_lshl_add_u32 v8, v4, 3, v6"); a("v_lshl_add_u32 v1, v7, 3, v6"); a("v_lshl_add_u32 v6, v7, 4, v6")
a("v_lshl_add_u32 v9, v11, 13, v10")
a("v_lshrrev_b32 v2, 2, v0"); a("v_mul_u32_u24 v2, 3584, v2"); a("v_and_b32 v7, 48, v10"); a("v_add_u32 v2, v2, v7")
a("s_mul_i32 s37, s%d, 224" % sB)
a("s_mov_b32 m0, %d" % LT0)
a("v_mov_b32 v16, 0"); a("v_mov_b32 v17, 0")
a("ds_write_b64 v16, v[16:17] offset:%d" % LFLAG); a("ds_write_b64 v16, v[16:17] offset:%d" % (LFLAG + 8))
a("s_waitcnt lgkmcnt(0)")
a("s_mov_b64 %s, %s" % (sp(SRD_T), sp(pWQ)))
a("s_mov_b64 %s, %s" % (sp(SRD_X), sp(pX)))
a("s_mov_b64 %s, %s" % (sp(SRD_W2), sp(pW1)))
for t in range(14):
    a("buffer_load_dwordx4 v9, %s, s98 offen%s lds" % (srd(SRD_T), POL))
    if t == 1:
        for i in range(3): a("buffer_load_dwordx4 %s, v6, %s, 0 offen offset:%d" % (v4(XS + 4 * i), srd(SRD_X), 256 * i))
        a("buffer_load_dwordx2 %s, v1, %s, 0 offen offset:768" % (v2(XS + 12), srd(SRD_X)))
        for m in range(7): a("buffer_load_dwordx2 %s, v8, %s, s37 offen offset:%d" % (v2(XF + 2 * m), srd(SRD_X), 32 * m))
    a("s_add_u32 m0, m0, 1024")
    if t < 13: a("s_add_u32 s98, s98, %d" % (8 * 8192))
for t in range(7):
    a("buffer_load_dwordx4 v2, %s, s99 offen%s lds" % (srd(SRD_W2), POL))
    if t < 6: a("s_add_u32 m0, m0, 1024"); a("s_add_u32 s99, s99, %d" % (16 * 3584))
a("s_load_dword s%d, %s, 0" % (sTAG, sp(pWS)))
a("s_mov_b64 %s, %s" % (sp(SRD_WS), sp(pWS)))
a("s_mov_b64 %s, %s" % (sp(SRD_KV), sp(pV)))
a("s_branch V_PROJ")

a("NOTW0:")
a("s_cmp_ge_u32 s%d, 4" % sWAVE)
a("s_waitcnt lgkmcnt(0)")
a("s_load_dword s%d, %s, 0" % (sTAG, sp(pWS)))
a("s_mov_b64 %s, %s" % (sp(SRD_WS), sp(pWS)))
a("s_cselect_b64 %s, %s, %s" % (sp(SRD_KV), sp(pK), sp(pV)))
a("s_cbranch_scc1 KWAVE")
if opt["warm"] == "1":
    a("s_lshl_b32 s94, s39, 11"); a("s_lshl_b32 s95, s%d, 10" % sWAVE); a("s_add_u32 s94, s94, s95"); a("s_add_u32 s94, s94, 0x%x" % (RA - 1024))
    a("s_lshl_b32 s95, s%d, 10" % sX8); a("s_add_u32 s95, s95, 0x%x" % (RA + STO))
    a("s_cmp_eq_u32 s%d, 3" % sWAVE); a("s_cselect_b32 s94, s95, s94")
    a("v_lshlrev_b32 v1, 4, v0")
a("s_barrier")
if opt["warm"] == "1":
    a("buffer_load_dwordx4 v[212:215], v1, %s, s94 offen sc1" % srd(SRD_WS))
make_tag()
a("s_branch V_B2")

a("KWAVE:")
KR = 16
a("s_sub_u32 s%d, s%d, 4" % (sWAVE, sWAVE))
a("s_setprio 2")
a("v_lshlrev_b32 v1, 11, v3"); a("v_lshl_add_u32 v1, v4, 6, v1"); a("v_lshl_add_u32 v1, v5, 4, v1")
a("s_lshl_b32 s37, s%d, 14" % sWAVE); a("s_add_u32 s36, s36, s37")
a("s_lshr_b32 s38, s%d, 1" % sWAVE); a("s_lshl_b32 s38, s38, 13"); a("s_add_u32 s36, s36, s38"); a("s_xor_b32 s37, s36, 8192")
a("s_barrier")
def kload(i):
    G, t, u = i >> 3, (i >> 1) & 3, i & 1
    a("buffer_load_dwordx4 %s, v1, %s, s%d offen offset:%d%s" % (v4(KR + 4 * i), srd(SRD_KV), 36 + G, t * 512 + u * 256, POL))
for i in range(N1): kload(i)
stamp(1)
a("s_branch K_MAIN")

a("V_PROJ:")
tr_addrs()
a("s_mov_b32 s37, 0x3f803f80")
a("v_mov_b32 v6, 0"); a("v_mov_b32 v7, 0")
WF, DT, PB = 116, 180, 196
for r in [XF + 14, XF + 15] + [WF + 16 * tp + k for tp in range(4) for k in (14, 15)]: a("v_mov_b32 v%d, 0" % r)
for nn, val in ((sM1, 0x22222222), (sM2, 0x44444444), (sM3, 0x88888888)):
    a("s_mov_b32 s%d, 0x%x" % (nn, val)); a("s_mov_b32 s%d, 0x%x" % (nn + 1, val))
a("v_lshlrev_b32 v2, 6, v4"); a("v_lshl_add_u32 v2, v5, 4, v2")
a("v_lshl_add_u32 v1, v3, 9, v2")
a("v_lshl_add_u32 v2, v3, 8, v2")
a("v_lshrrev_b32 v80, 2, v0"); a("v_lshlrev_b32 v80, 6, v80"); a("v_lshl_add_u32 v80, v5, 3, v80")
a("v_and_b32 v81, 1, v4"); a("v_lshl_add_u32 v80, v81, 5, v80"); a("v_xor_b32 v81, 32, v80")
a("s_lshl_b32 s98, s39, 11"); a("s_add_u32 s98, s98, 0x%x" % QP)
a("s_lshl_b32 s99, s39, 10"); a("s_add_u32 s99, s99, 0x%x" % HP)
if int(opt["b1wait"]) < 63: a("s_waitcnt vmcnt(%d)" % int(opt["b1wait"]))
a("s_barrier")
stamp(1)
a("s_waitcnt vmcnt(26)")
for i in range(14):
    a("v_dot2c_f32_bf16 v6, s37, v%d" % (XS + i)); a("v_dot2c_f32_bf16 v7, v%d, v%d" % (XS + i, XS + i))
for x in (6, 7): dpp_red("v_add_f32", x, "quad_perm:[1,0,3,2]")
for x in (6, 7): dpp_red("v_add_f32", x, "quad_perm:[2,3,0,1]")
rows_allreduce("v_add_f32", (6, 7), (8, 9))
a("v_mul_f32 v6, 0x%x, v6" % f2u(1.0 / 448)); a("v_mul_f32 v7, 0x%x, v7" % f2u(1.0 / 448))
a("v_fma_f32 v7, -v6, v6, v7"); a("v_max_f32 v7, 0, v7")
bf16_round(7); a("v_add_f32 v7, 0x%x, v7" % f2u(1e-5)); bf16_round(7)
a("v_sqrt_f32 v7, v7"); bf16_round(6); bf16_round(7); a("v_rcp_f32 v7, v7")
a("s_waitcnt vmcnt(19)")
a("v_mul_f32 v6, v6, v7")
for i in range(14):
    r = XF + i; t = XS + 2 * (i & 1)
    a("v_lshlrev_b32 v%d, 16, v%d" % (t, r)); a("v_and_b32 v%d, 0xffff0000, v%d" % (t + 1, r))
    a("v_fma_f32 v%d, v%d, v7, -v6" % (t, t)); a("v_fma_f32 v%d, v%d, v7, -v6" % (t + 1, t + 1))
    a("v_cvt_pk_bf16_f32 v%d, v%d, v%d" % (r, t, t + 1))
make_tag()
a("s_xor_b32 s%d, s%d, s%d" % (sTGX, sTAG, sXCC))
for i in (1, 5, 9): a("v_mov_b32 v%d, s%d" % (PB + i, sTAG))
for i in (3, 7, 11): a("v_mov_b32 v%d, s%d" % (PB + i, sTGX))
stamp(2)
a("s_waitcnt vmcnt(7)")
stamp(3)
def proj_mfma(q, d):
    for u in range(4): a("%s %s, %s, %s, %s" % (MF, v4(d), v4(WF + 16 * q + 4 * u), v4(XF + 4 * u), "0" if u == 0 else v4(d)))
for tp in range(4):
    for m in range(7): a("ds_read_b64_tr_b16 %s, v%d offset:%d" % (v2(WF + 16 * tp + 2 * m), 12 + tp, LT0 + 2048 * m))
    if tp >= 1:
        a("s_waitcnt lgkmcnt(7)"); proj_mfma(tp - 1, DT + 4 * (tp - 1))
a("s_waitcnt lgkmcnt(0)")
proj_mfma(3, DT + 12)
for r in range(4): a("v_cndmask_b32 v%d, v%d, v%d, %s" % (PB + 2 * r, DT + r, DT + 4 + r, sp(sM1)))
for r in range(4): a("v_cndmask_b32 v%d, v%d, v%d, %s" % (PB + 2 * r, PB + 2 * r, DT + 8 + r, sp(sM2)))
for r in range(4): a("v_cndmask_b32 v%d, v%d, v%d, %s" % (PB + 2 * r, PB + 2 * r, DT + 12 + r, sp(sM3)))
a("buffer_store_dwordx4 %s, v1, %s, s98 offen sc1" % (v4(PB), srd(SRD_WS)))
a("buffer_store_dwordx4 %s, v1, %s, s98 offen offset:256 sc1" % (v4(PB + 4), srd(SRD_WS)))
a("s_waitcnt vmcnt(2)")
for tp in range(2):
    for m in range(7): a("ds_read_b64_tr_b16 %s, v%d offset:%d" % (v2(WF + 16 * tp + 2 * m), 80 + tp, LT1 + 1024 * m))
a("s_waitcnt lgkmcnt(7)"); proj_mfma(0, DT)
a("s_waitcnt lgkmcnt(0)"); proj_mfma(1, DT + 4)
for k in range(2):
    a("v_cndmask_b32 v%d, v%d, v%d, %s" % (PB + 8 + 2 * k, DT + k, DT + 2 + k, sp(sM2)))
for k in range(2):
    a("v_cndmask_b32 v%d, v%d, v%d, %s" % (PB + 8 + 2 * k, PB + 8 + 2 * k, DT + 4 + k, sp(sM1)))
for k in range(2):
    a("v_cndmask_b32 v%d, v%d, v%d, %s" % (PB + 8 + 2 * k, PB + 8 + 2 * k, DT + 6 + k, sp(sM3)))
a("buffer_store_dwordx4 %s, v2, %s, s99 offen sc1" % (v4(PB + 8), srd(SRD_WS)))
a("s_setprio 0")
a("V_B2:")
stamp(4)
a("s_barrier")
VR, VF, DV = 16, 80, 144
a("v_lshlrev_b32 v1, 12, v11"); a("v_and_b32 v6, 7, v0"); a("v_lshl_add_u32 v1, v6, 4, v1")
a("s_lshl_b32 s37, s%d, 7" % sWAVE); a("s_add_u32 s36, s36, s37"); a("s_add_u32 s37, s36, 32768")
a("s_mov_b32 s98, 0x05040100"); a("s_mov_b32 s99, 0x07060302")
a("v_bfe_u32 v6, v0, 2, 1"); a("v_lshlrev_b32 v8, 9, v6"); a("v_lshl_add_u32 v8, v4, 6, v8")
a("v_and_b32 v7, 1, v0"); a("v_lshl_add_u32 v8, v7, 5, v8"); a("v_lshlrev_b32 v6, 9, v6")
SS, PFR, STT, TT, OO = 176, 192, 200, 204, 208
a("s_lshl_b32 s95, s%d, 10" % sX8); a("s_lshl_b32 s96, s%d, 4" % sR); a("s_add_u32 s95, s95, s96"); a("s_add_u32 s95, s95, 0x%x" % (RA + STO))
a("s_lshl_b32 s96, s%d, 16" % sX8); a("s_lshl_b32 s97, s%d, 13" % sWAVE); a("s_add_u32 s96, s96, s97")
a("s_lshr_b32 s97, s%d, 2" % sS); a("s_lshl_b32 s97, s97, 11"); a("s_add_u32 s96, s96, s97")
a("s_lshl_b32 s97, s%d, 6" % sB); a("s_add_u32 s96, s96, s97"); a("s_and_b32 s97, s%d, 3" % sS); a("s_lshl_b32 s97, s97, 4"); a("s_add_u32 s96, s96, s97")
a("s_add_u32 s96, s96, 0x%x" % RA)
a("v_bfe_u32 v9, v0, 4, 1"); a("v_lshlrev_b32 v9, 15, v9"); a("v_lshl_add_u32 v9, v7, 9, v9")
a("v_bfe_u32 v7, v0, 2, 1"); a("v_lshl_add_u32 v9, v7, 12, v9"); a("v_bfe_u32 v7, v0, 1, 1"); a("v_lshl_add_u32 v9, v7, 10, v9")
a("v_bfe_u32 v7, v0, 3, 1"); a("v_lshl_add_u32 v7, v7, 8, v9")
a("v_mov_b32 v2, 0")
a("s_mov_b32 s100, 0x%x" % f2u(LOG2E / 16))
if opt["b2b"] == "1": a("s_barrier")
stamp(5)
for i in range(16):
    a("buffer_load_dwordx4 %s, v1, %s, s%d offen offset:%d%s" % (v4(VR + 4 * i), srd(SRD_KV), 36 + (i >> 3), 512 * (i & 7), POL))
for r in (STT + 1, STT + 3, OO + 1, OO + 3): a("v_mov_b32 v%d, s%d" % (r, sTAG))
a("s_bitcmp1_b32 s%d, 0" % sWAVE); a("s_cselect_b32 s92, 16, 1"); a("s_mov_b32 s93, 0")
stamp(6)
a("s_barrier")
stamp(7)
def vperm(pair):
    G, i = pair >> 2, pair & 3
    for m in range(4):
        A = VR + 4 * (2 * pair) + m; B = A + 4
        a("v_perm_b32 v%d, v%d, v%d, s98" % (VF + 32 * G + 4 * (2 * m) + i, B, A))
        a("v_perm_b32 v%d, v%d, v%d, s99" % (VF + 32 * G + 4 * (2 * m + 1) + i, B, A))
for k, off in enumerate((0, 16, 256, 272)): a("ds_read_b128 %s, v8 offset:%d" % (v4(SS + 4 * k), LS + off))
a("ds_read_b128 %s, v2 offset:%d" % (v4(TT), LFLAG))
a("s_waitcnt lgkmcnt(0)")
a("v_min3_u32 v2, v%d, v%d, v%d" % (TT, TT + 1, TT + 2)); a("v_min_u32 v2, v2, v%d" % (TT + 3))
a("v_readfirstlane_b32 s101, v2")
a("v_max3_f32 v8, v%d, v%d, v%d" % (SS, SS + 1, SS + 2)); a("v_max3_f32 v9, v%d, v%d, v%d" % (SS + 3, SS + 4, SS + 5))
a("v_max3_f32 v8, v8, v%d, v%d" % (SS + 6, SS + 7)); a("v_max3_f32 v9, v9, v%d, v%d" % (SS + 8, SS + 9))
a("v_max3_f32 v8, v8, v%d, v%d" % (SS + 10, SS + 11)); a("v_max3_f32 v9, v9, v%d, v%d" % (SS + 12, SS + 13))
a("v_max3_f32 v8, v8, v%d, v%d" % (SS + 14, SS + 15)); a("v_max_f32 v8, v8, v9")
dpp_red("v_max_f32", 8, "quad_perm:[1,0,3,2]")
rows_allreduce("v_max_f32", (8,), (9,))
a("v_mul_f32 v%d, s100, v8" % STT)
for k in range(16): a("v_fma_f32 v%d, v%d, s100, -v%d" % (SS + k, SS + k, STT))
for k in range(16): a("v_exp_f32 v%d, v%d" % (SS + k, SS + k))
for k in range(8): a("v_cvt_pk_bf16_f32 v%d, v%d, v%d" % (PFR + k, SS + 2 * k, SS + 2 * k + 1))
for k in range(8): a("v_add_f32 v%d, v%d, v%d" % (SS + k, SS + k, SS + 8 + k))
for k in range(4): a("v_add_f32 v%d, v%d, v%d" % (SS + k, SS + k, SS + 4 + k))
a("v_add_f32 v%d, v%d, v%d" % (SS, SS, SS + 2)); a("v_add_f32 v%d, v%d, v%d" % (SS + 1, SS + 1, SS + 3))
a("v_add_f32 v%d, v%d, v%d" % (STT + 2, SS, SS + 1))
dpp_red("v_add_f32", STT + 2, "quad_perm:[1,0,3,2]")
rows_allreduce("v_add_f32", (STT + 2,), (9,))
def pv_mfma(G):
    for j in range(8): a("%s %s, %s, %s, %s" % (MF, v4(DV + 4 * j), v4(PFR + 4 * G), v4(VF + 32 * G + 4 * j), "0" if G == 0 else v4(DV + 4 * j)))
for p in range(8):
    a("s_waitcnt vmcnt(%d)" % (16 - 2 * (p + 1))); vperm(p)
    if p == 3: pv_mfma(0)
stamp(8)
pv_mfma(1)
a("s_cmp_eq_u32 s101, %d" % (2 if opt["local"] == "1" else 3))
a("s_cbranch_scc0 V_REMOTE")
a("s_mov_b64 exec, s[92:93]")
a("buffer_store_dwordx4 %s, v6, %s, s95 offen" % (v4(STT), srd(SRD_WS)))
a("s_mov_b64 exec, -1")
def o_epilogue():
    for j in range(4): a("v_add_f32_dpp v%d, v%d, v%d row_ror:8 row_mask:0xf bank_mask:0x3" % (TT + j, DV + 4 * j + 1, DV + 4 * j))
    for j in range(4, 8): a("v_add_f32_dpp v%d, v%d, v%d row_ror:8 row_mask:0xf bank_mask:0xc" % (TT + j - 4, DV + 4 * j, DV + 4 * j + 1))
    a("v_cvt_pk_bf16_f32 v%d, v%d, v%d" % (OO, TT, TT + 1)); a("v_cvt_pk_bf16_f32 v%d, v%d, v%d" % (OO + 2, TT + 2, TT + 3))
    a("s_mov_b32 exec_hi, 0")
o_epilogue()
a("buffer_store_dwordx4 %s, v7, %s, s96 offen" % (v4(OO), srd(SRD_WS)))
a("V_PUB:")
a("s_mov_b64 exec, -1")
stamp(9)
a("s_cmp_ge_u32 s%d, 28" % sR)
a("s_cbranch_scc1 FINISH")
a("s_barrier")
a("s_cmp_eq_u32 s%d, 0" % sWAVE)
a("s_cbranch_scc1 REDUCER")
a("s_barrier")
a("s_branch FINISH")
a("REDUCER:")
a("s_lshr_b32 s94, s2, 5"); a("s_and_b32 s95, s2, 31")
a("s_mov_b64 %s, %s" % (sp(SRD_O), sp(pOUT)))
a("s_bfe_u32 s96, s2, 0x20002"); a("s_mul_i32 s96, s96, 896"); a("s_lshl_b32 s97, s94, 7"); a("s_add_u32 s96, s96, s97")
a("s_bfe_u32 s97, s2, 0x10004"); a("s_lshl_b32 s97, s97, 6"); a("s_add_u32 s96, s96, s97")
a("s_and_b32 s97, s2, 3"); a("s_lshl_b32 s97, s97, 3"); a("s_add_u32 s96, s96, s97")
a("v_lshlrev_b32 v6, 1, v5")
a("buffer_load_ushort v16, v6, %s, s96 offen" % srd(SRD_X)); a("buffer_load_ushort v17, v6, %s, s96 offen offset:32" % srd(SRD_X))
a("v_lshrrev_b32 v7, 2, v0"); a("v_lshlrev_b32 v7, 11, v7"); a("v_lshl_add_u32 v7, v5, 4, v7")
a("s_lshl_b32 s97, s94, 16"); a("s_lshl_b32 s98, s95, 6"); a("s_add_u32 s97, s97, s98"); a("s_add_u32 s97, s97, 0x%x" % FP); a("s_add_u32 s98, s97, 32768")
a("s_barrier")
def issue_r(st=0):
    for y in range(2): a("buffer_load_dwordx4 %s, v7, %s, s%d offen%s" % (v4(20 + 8 * st + 4 * y), srd(SRD_WS), 97 + y, RPOL))
RS = int(opt["rslp"])
if opt["rpipe"] == "1":
    NS = 3
    for st in range(NS - 1):
        issue_r(st)
        if RS: a("s_sleep %d" % RS)
    a("PR:")
    for st in range(NS):
        issue_r((st + NS - 1) % NS)
        a("s_waitcnt vmcnt(%d)" % (2 * (NS - 1)))
        check_tags([21 + 8 * st, 23 + 8 * st, 25 + 8 * st, 27 + 8 * st])
        a("v_add_f32 v18, v%d, v%d" % (20 + 8 * st, 24 + 8 * st)); a("v_add_f32 v19, v%d, v%d" % (22 + 8 * st, 26 + 8 * st))
        a("s_cbranch_scc1 PR_ok")
        if RS: a("s_sleep %d" % RS)
    a("s_sub_u32 s%d, s%d, 1" % (sSPIN, sSPIN))
    a("s_cbranch_scc0 PR")
    a("PR_ok:")
else:
    issue_r(); a("s_waitcnt vmcnt(0)")
    poll_check("PR", issue_r, [21, 23, 25, 27], sleep=RS)
    a("v_add_f32 v18, v20, v24"); a("v_add_f32 v19, v22, v26")
stamp(10)
a("v_lshlrev_b32 v16, 16, v16"); a("v_lshlrev_b32 v17, 16, v17")
a("s_nop 0")
for x in (18, 19): dpp_red("v_add_f32", x, "row_ror:4")
for x in (18, 19): dpp_red("v_add_f32", x, "row_ror:8")
rows_allreduce("v_add_f32", (18, 19), (8, 9))
a("v_add_f32 v18, v18, v16"); a("v_add_f32 v19, v19, v17")
a("v_cvt_pk_bf16_f32 v18, v18, v19")
a("s_mov_b64 exec, 0xf")
a("buffer_store_short v18, v6, %s, s96 offen" % srd(SRD_O))
a("buffer_store_short_d16_hi v18, v6, %s, s96 offen offset:32" % srd(SRD_O))
a("s_mov_b64 exec, -1")
a("s_cmp_lg_u32 s2, 0")
a("s_cbranch_scc1 FINISH")
a("v_mov_b32 v8, s%d" % sTAG); a("v_mov_b32 v9, 0")
a("s_mov_b64 exec, 1")
a("buffer_store_dword v8, v9, %s, 0 offen sc1" % srd(SRD_WS))
a("s_mov_b64 exec, -1")
a("s_branch FINISH")

a("K_MAIN:")
a("s_and_b32 s88, s%d, 3" % sR); a("s_lshr_b32 s89, s%d, 2" % sR)
a("s_mov_b64 %s, %s" % (sp(SRD_T), sp(pWO))); a("s_mov_b64 %s, %s" % (sp(SRD_W2), sp(pW2))); a("s_mov_b64 %s, %s" % (sp(SRD_O), sp(pB1)))
a("s_lshl_b32 s92, s%d, 12" % sWAVE)
a("s_lshl_b32 s90, s%d, 2" % sWAVE); a("s_add_u32 s90, s90, s88")
a("s_mul_i32 s91, s%d, 7" % sX8); a("s_add_u32 s91, s91, s90")
a("s_cmp_ge_u32 s%d, 28" % sR); a("s_cselect_b32 s90, 7, s90")
a("s_lshl_b32 s64, s%d, 4" % sX8); a("s_lshl_b32 s97, s88, 2"); a("s_add_u32 s64, s64, s97"); a("s_add_u32 s64, s64, s%d" % sWAVE)
a("s_mul_i32 s64, s64, %d" % (32 * 896)); a("s_lshl_b32 s97, s89, 7"); a("s_add_u32 s64, s64, s97")
a("s_mul_i32 s65, s91, %d" % (32 * 896)); a("s_add_u32 s65, s65, s97")
a("s_lshl_b32 s94, s%d, 16" % sX8); a("s_add_u32 s94, s94, s92")
a("s_lshl_b32 s95, s%d, 9" % sB); a("s_add_u32 s94, s94, s95"); a("s_add_u32 s94, s94, 0x%x" % QP)
for k in range(1, 4): a("s_add_u32 s%d, s94, %d" % (94 + k, 16384 * k))
a("s_lshl_b32 s66, s%d, 5" % sX8); a("s_add_u32 s66, s66, s90"); a("s_lshl_b32 s66, s66, 10"); a("s_add_u32 s66, s66, 0x%x" % HP)
a("s_lshl_b32 s67, s91, 6")
a("s_lshl_b32 s68, s%d, 1" % sX8); a("s_lshr_b32 s99, s88, 1"); a("s_add_u32 s68, s68, s99"); a("s_lshl_b32 s68, s68, 9"); a("s_add_u32 s68, s68, 0x%x" % (RA + STO))
a("s_lshl_b32 s69, s%d, 16" % sX8); a("s_lshl_b32 s99, s88, 14"); a("s_add_u32 s69, s69, s99"); a("s_add_u32 s69, s69, s92"); a("s_add_u32 s69, s69, 0x%x" % RA)
for k in range(1, 4): a("s_add_u32 s%d, s66, %d" % (72 + k, 8192 * k))
a("s_lshl_b32 s71, s89, 5"); a("s_lshl_b32 s99, s%d, 2" % sX8); a("s_add_u32 s71, s71, s99"); a("s_add_u32 s71, s71, s88")
a("s_lshl_b32 s71, s71, 1"); a("s_add_u32 s71, s71, s%d" % sWAVE); a("s_lshl_b32 s71, s71, 10"); a("s_add_u32 s71, s71, 0x%x" % FP)
tr_addrs()
for tp in range(4): a("v_add_u32 v%d, s92, v%d" % (12 + tp, 12 + tp))
vWD, vQG, vQW, vQR, vSW, vBI, vHG, vST, vOG, vRW, vRR, vL16, vFL, vZ = 184, 185, 186, 187, 188, 189, 190, 191, 192, 193, 194, 195, 196, 197
a("v_mul_u32_u24 v%d, 896, v11" % vWD); a("v_add_u32 v%d, v%d, v10" % (vWD, vWD))
a("v_lshrrev_b32 v7, 5, v0"); a("v_bfe_u32 v9, v0, 4, 1")
a("v_lshlrev_b32 v6, 11, v7"); a("v_and_b32 v8, 31, v0"); a("v_lshl_add_u32 v%d, v8, 4, v6" % vQG)
a("v_lshlrev_b32 v6, 7, v7"); a("v_lshl_add_u32 v6, v5, 5, v6"); a("v_lshl_add_u32 v6, v3, 3, v6"); a("v_lshl_add_u32 v6, v9, 2, v6")
a("s_lshl_b32 s98, s%d, 8" % sWAVE); a("v_add_u32 v%d, s98, v6" % vQW)
a("v_bfe_u32 v6, v0, 2, 1"); a("v_lshlrev_b32 v6, 9, v6"); a("v_lshl_add_u32 v6, v4, 6, v6"); a("v_lshl_add_u32 v%d, v5, 4, v6" % vQR)
a("v_lshlrev_b32 v6, 9, v9"); a("v_lshl_add_u32 v6, v3, 4, v6"); a("s_lshl_b32 s98, s%d, 7" % sWAVE); a("s_lshr_b32 s99, s38, 7"); a("s_add_u32 s98, s98, s99")
a("v_add_u32 v%d, s98, v6" % vSW); a("v_xor_b32 v198, 64, v%d" % vSW)
a("v_and_b32 v6, 1, v0"); a("v_lshlrev_b32 v6, 5, v6"); a("v_lshl_add_u32 v6, v4, 3, v6"); a("v_bfe_u32 v8, v0, 1, 1"); a("v_lshl_add_u32 v%d, v8, 2, v6" % vBI)
a("v_lshlrev_b32 v6, 4, v5"); a("v_lshl_add_u32 v6, v3, 8, v6"); a("v_lshl_add_u32 v%d, v4, 6, v6" % vHG)
a("v_and_b32 v6, 7, v0"); a("v_lshl_add_u32 v6, v4, 3, v6"); a("v_lshlrev_b32 v%d, 4, v6" % vST)
a("v_lshlrev_b32 v%d, 4, v0" % vL16)
a("s_lshl_b32 s98, s%d, 10" % sWAVE); a("v_add_u32 v%d, s98, v%d" % (vRW, vL16))
a("s_lshl_b32 s98, s%d, 3" % sWAVE); a("v_add_u32 v%d, s98, v%d" % (vRR, vL16))
a("s_lshl_b32 s98, s%d, 2" % sWAVE); a("v_mov_b32 v%d, s98" % vFL); a("v_mov_b32 v%d, 0" % vZ)
ACC, PO = 156, 160
for i in range(4): a("v_mov_b32 v%d, 0" % (ACC + i))
make_tag()
a("v_mov_b32 v%d, s%d" % (PO + 1, sTAG)); a("v_mov_b32 v%d, s%d" % (PO + 3, sTAG))
QG, HB, HG, SG, OG = 84, 164, 168, 200, 100
def issue_q():
    for k in range(4): a("buffer_load_dwordx4 %s, v%d, %s, s%d offen sc1" % (v4(QG + 4 * k), vQG, srd(SRD_WS), 94 + k))
def issue_h():
    for k, so in enumerate((66, 73, 74, 75)): a("buffer_load_dwordx4 %s, v%d, %s, s%d offen sc1" % (v4(HG + 4 * k), vHG, srd(SRD_WS), so))
def issue_o():
    for hf in range(2):
        for z in range(2): a("buffer_load_dwordx4 %s, v%d, %s, s69 offen offset:%d sc1" % (v4(OG + 8 * hf + 4 * z), vL16, srd(SRD_WS), 2048 * hf + 1024 * z))
    a("buffer_load_dwordx4 %s, v%d, %s, s68 offen sc1" % (v4(SG), vST, srd(SRD_WS)))
def wdma(s, so):
    for t in range(4):
        a("buffer_load_dwordx4 v%d, %s, s%d offen%s lds" % (vWD, srd(s), so, POL))
        if t < 3: a("s_add_u32 m0, m0, 1024"); a("s_add_u32 s%d, s%d, %d" % (so, so, 8 * 896))
def issue_w(lbl):
    a("s_add_u32 m0, s92, %d" % LW)
    wdma(SRD_T, 64)
    a("s_cmp_ge_u32 s90, 7"); a("s_cbranch_scc1 %s" % lbl)
    a("s_add_u32 m0, s92, %d" % LW2)
    wdma(SRD_W2, 65)
    a("%s:" % lbl)
stamp(2)
a("s_barrier")
for i in range(N1, 16): kload(i)
a("s_cmp_ge_u32 s%d, 28" % sR); a("s_cbranch_scc1 K_NOH")
if WFIRST: issue_w("K_W1")
a("s_cmp_ge_u32 s90, 7"); a("s_cbranch_scc1 K_NOH")
a("buffer_load_dword v%d, v%d, %s, s67 offen" % (HB, vBI, srd(SRD_O)))
issue_h()
a("K_NOH:")
issue_q()
stamp(3)
if opt["b2b"] == "1": a("s_barrier")
a("s_waitcnt vmcnt(0)")
poll_check("PQ", issue_q, [QG + 4 * k + 1 for k in range(4)], [QG + 4 * k + 3 for k in range(4)], sleep=SLP)
stamp(4)
a("v_add_f32 v%d, v%d, v%d" % (QG, QG, QG + 4)); a("v_add_f32 v%d, v%d, v%d" % (QG + 2, QG + 2, QG + 6))
a("v_add_f32 v%d, v%d, v%d" % (QG + 8, QG + 8, QG + 12)); a("v_add_f32 v%d, v%d, v%d" % (QG + 10, QG + 10, QG + 14))
a("v_add_f32 v%d, v%d, v%d" % (QG, QG, QG + 8)); a("v_add_f32 v%d, v%d, v%d" % (QG + 2, QG + 2, QG + 10))
a("v_cvt_pk_bf16_f32 v%d, v%d, v%d" % (QG, QG, QG + 2))
a("ds_write_b32 v%d, v%d offset:%d" % (vQW, QG, LQ))
for k in range(4): a("v_cmpx_eq_u32 vcc, s%d, v%d" % (sXCC, QG + 4 * k + 3))
a("s_cmp_eq_u64 exec, -1"); a("s_mov_b64 exec, -1"); a("s_cselect_b32 s98, 2, 1")
a("v_mov_b32 v82, s98")
a("s_waitcnt lgkmcnt(0)")
a("ds_write_b32 v%d, v82 offset:%d" % (vFL, LFLAG))
a("s_mov_b32 s99, %d" % (SPIN * 16))
a("PF:")
a("ds_read_b128 %s, v%d offset:%d" % (v4(QG + 4), vZ, LFLAG))
a("s_waitcnt lgkmcnt(0)")
a("v_min3_u32 v82, v%d, v%d, v%d" % (QG + 4, QG + 5, QG + 6)); a("v_min_u32 v82, v82, v%d" % (QG + 7))
a("v_readfirstlane_b32 s101, v82")
a("s_cmp_lg_u32 s101, 0")
a("s_cbranch_scc1 PF_ok")
a("s_sub_u32 s99, s99, 1")
a("s_cbranch_scc0 PF")
a("PF_ok:")
QF = 92
a("ds_read_b128 %s, v%d offset:%d" % (v4(QF), vQR, LQ)); a("ds_read_b128 %s, v%d offset:%d" % (v4(QF + 4), vQR, LQ + 256))
DQ, SC = 116, 148
a("s_waitcnt lgkmcnt(0)")
for t in range(8): a("%s %s, %s, %s, 0" % (MF, v4(DQ + 4 * t), v4(QF), v4(KR + 8 * t)))
for t in range(8): a("%s %s, %s, %s, %s" % (MF, v4(DQ + 4 * t), v4(QF + 4), v4(KR + 8 * t + 4), v4(DQ + 4 * t)))
for r in range(4):
    for t in range(8):
        qp = "quad_perm:[%d,%d,%d,%d]" % (r, r, r, r)
        if r == 0: a("v_mov_b32_dpp v%d, v%d %s%s" % (SC + t, DQ + 4 * t, qp, DPPM))
        else: a("v_add_f32_dpp v%d, v%d, v%d %s%s" % (SC + t, DQ + 4 * t + r, SC + t, qp, DPPM))
a("ds_write_b128 v%d, %s offset:%d" % (vSW, v4(SC), LS)); a("ds_write_b128 v198, %s offset:%d" % (v4(SC + 4), LS))
a("s_cmp_eq_u32 s101, %d" % (2 if opt["local"] == "1" else 3)); a("s_cselect_b32 s98, 0, 0x%x" % (RB - RA))
for r in (68, 69): a("s_add_u32 s%d, s%d, s98" % (r, r))
a("s_waitcnt lgkmcnt(0)")
stamp(5)
a("s_barrier")
stamp(6)
a("s_cmp_ge_u32 s%d, 28" % sR)
a("s_cbranch_scc1 KFINISH")
if not WFIRST: issue_w("K_W2")
a("s_cmp_ge_u32 s90, 7")
a("s_cbranch_scc1 NOMLP1")
poll_check("PH", issue_h, [HG + 4 * k + 1 for k in range(4)], [HG + 4 * k + 3 for k in range(4)], sleep=SLP)
hv = [HG, HG + 2]
for x in hv:
    a("v_add_f32 v%d, v%d, v%d" % (x, x, x + 4)); a("v_add_f32 v%d, v%d, v%d" % (x + 8, x + 8, x + 12))
a("v_lshlrev_b32 v%d, 16, v%d" % (HG + 1, HB)); a("v_and_b32 v%d, 0xffff0000, v%d" % (HG + 3, HB))
for x in hv: a("v_add_f32 v%d, v%d, v%d" % (x, x, x + 8))
for x in hv: a("v_add_f32 v%d, v%d, v%d" % (x, x, x + 1))
a("s_mov_b32 s96, 0x%x" % f2u(-LOG2E))
T1, T2 = 16, 24
for k, x in enumerate(hv): a("v_mul_f32 v%d, s96, |v%d|" % (x + 1, x))
for k, x in enumerate(hv): a("v_exp_f32 v%d, v%d" % (x + 1, x + 1))
for k, x in enumerate(hv):
    a("v_cmp_lt_f32 vcc, 0, v%d" % x)
    a("v_mul_f32 v%d, v%d, v%d" % (T1 + k, x + 1, x + 1))
    a("v_cndmask_b32 v%d, 1.0, v%d, vcc" % (T2 + k, T1 + k))
    a("v_cndmask_b32_e64 v%d, v%d, 1.0, vcc" % (T1 + k, T1 + k))
    a("v_fma_f32 v%d, v%d, 2.0, v%d" % (T1 + k, x + 1, T1 + k))
    a("v_fma_f32 v%d, v%d, 2.0, v%d" % (T2 + k, T2 + k, T1 + k))
for k, x in enumerate(hv): a("v_rcp_f32 v%d, v%d" % (T2 + k, T2 + k))
for k, x in enumerate(hv): a("v_mul_f32 v%d, v%d, v%d" % (x, x, T1 + k))
for k, x in enumerate(hv): a("v_mul_f32 v%d, v%d, v%d" % (x, x, T2 + k))
AF = 80
a("v_cvt_pk_bf16_f32 v%d, v%d, v%d" % (HG, HG, HG + 2))
for k, src in enumerate((0, 2, 1, 3)): a("v_mov_b32_dpp v%d, v%d quad_perm:[%d,%d,%d,%d]%s" % (AF + k, HG, src, src, src, src, DPPM))
a("NOMLP1:")
WOF, W2F, DM, DO = 116, 132, 48, 16
def wfrags(lbl):
    for tp in range(4):
        for m in range(2): a("ds_read_b64_tr_b16 %s, v%d offset:%d" % (v2(WOF + 4 * tp + 2 * m), 12 + tp, LW + 2048 * m))
    a("s_cmp_ge_u32 s90, 7"); a("s_cbranch_scc1 %s" % lbl)
    for tp in range(4):
        for m in range(2): a("ds_read_b64_tr_b16 %s, v%d offset:%d" % (v2(W2F + 4 * tp + 2 * m), 12 + tp, LW2 + 2048 * m))
    a("s_waitcnt lgkmcnt(0)")
    for tp in range(4): a("%s %s, %s, %s, 0" % (MF, v4(DM + 4 * tp), v4(AF), v4(W2F + 4 * tp)))
    for tp in range(4): a("v_mov_b32 v%d, v%d" % (ACC + tp, DM + 4 * tp))
    a("%s:" % lbl)
if WFIRST: wfrags("NOMLP2")
stamp(7)
a("s_barrier")
stamp(8)
issue_o()
if not WFIRST:
    a("s_waitcnt vmcnt(5)")
    wfrags("NOMLP2")
a("s_waitcnt vmcnt(0)")
poll_check("PO", issue_o, [OG + 4 * k + j for k in range(4) for j in (1, 3)] + [SG + 1, SG + 3])
stamp(9)
for hf in range(2):
    o = OG + 8 * hf
    a("v_mov_b32 v%d, v%d" % (o + 1, o + 2)); a("v_mov_b32 v%d, v%d" % (o + 2, o + 4)); a("v_mov_b32 v%d, v%d" % (o + 3, o + 6))
a("v_mov_b32 v%d, v%d" % (SG + 1, SG))
a("s_waitcnt lgkmcnt(0)")
fops = [lambda: dpp_red("v_max_f32", SG + 1, "quad_perm:[1,0,3,2]"), lambda: dpp_red("v_max_f32", SG + 1, "quad_perm:[2,3,0,1]"),
        lambda: dpp_red("v_max_f32", SG + 1, "row_half_mirror"),
        lambda: (a("v_sub_f32 v%d, v%d, v%d" % (SG, SG, SG + 1)), a("v_exp_f32 v%d, v%d" % (SG, SG))),
        lambda: a("v_mul_f32 v%d, v%d, v%d" % (SG + 2, SG + 2, SG)),
        lambda: dpp_red("v_add_f32", SG + 2, "quad_perm:[1,0,3,2]"), lambda: dpp_red("v_add_f32", SG + 2, "quad_perm:[2,3,0,1]"),
        lambda: dpp_red("v_add_f32", SG + 2, "row_half_mirror")]
k = 0
for hf in range(2):
    for tp in range(4):
        a("%s %s, %s, %s, 0" % (MF, v4(DO + 16 * hf + 4 * tp), v4(OG + 8 * hf), v4(WOF + 4 * tp)))
        fops[k](); k += 1
a("v_rcp_f32 v%d, v%d" % (SG + 2, SG + 2)); a("v_mul_f32 v%d, v%d, v%d" % (SG, SG, SG + 2))
for hf in range(2):
    for r in range(4):
        for tp in range(4):
            a("v_fmac_f32_dpp v%d, v%d, v%d row_newbcast:%d%s" % (ACC + tp, SG, DO + 16 * hf + 4 * tp + r, 4 * hf + r, DPPM))
a("ds_write_b128 v%d, %s offset:%d" % (vRW, v4(ACC), LRED))
a("s_waitcnt lgkmcnt(0)")
a("s_barrier")
a("s_cmp_ge_u32 s%d, 2" % sWAVE)
a("s_cbranch_scc1 KFINISH")
for u in range(4): a("ds_read_b64 %s, v%d offset:%d" % (v2(16 + 2 * u), vRR, LRED + 1024 * u))
a("s_waitcnt lgkmcnt(0)")
a("v_add_f32 v16, v16, v18"); a("v_add_f32 v17, v17, v19"); a("v_add_f32 v20, v20, v22"); a("v_add_f32 v21, v21, v23")
a("v_add_f32 v%d, v16, v20" % PO); a("v_add_f32 v%d, v17, v21" % (PO + 2))
a("buffer_store_dwordx4 %s, v%d, %s, s71 offen%s" % (v4(PO), vL16, srd(SRD_WS), RPOL))
stamp(10)
a("KFINISH:")
if STAMPS: a("s_add_u32 s%d, s%d, 4" % (sWAVE, sWAVE))
a("FINISH:")
if STAMPS == 1:
    a("s_waitcnt vmcnt(0)")
    stamp(11)
    a("s_lshl_b32 s94, s2, 3"); a("s_add_u32 s94, s94, s%d" % sWAVE); a("s_lshl_b32 s94, s94, 7"); a("s_add_u32 s94, s94, 0x%x" % STAMP_OFF)
    a("v_mov_b32 v1, 0")
    a("s_mov_b64 exec, 1")
    for i in range(12):
        a("v_mov_b32 v4, s%d" % (40 + 2 * i)); a("v_mov_b32 v5, s%d" % (41 + 2 * i))
        a("buffer_store_dwordx2 v[4:5], v1, %s, s94 offen offset:%d" % (srd(SRD_WS), 8 * i))
        a("s_nop 1")
if STAMPS == 2:
    a("s_waitcnt vmcnt(0)")
    stamp(11)
    a("s_cmp_ge_u32 s%d, 28" % sR); a("s_cbranch_scc1 EXIT")
    a("s_and_b32 s94, s%d, 3" % sWAVE); a("s_cmp_lg_u32 s94, 0"); a("s_cbranch_scc1 EXIT")
    a("s_mov_b64 %s, s[84:85]" % sp(SRD_O)); a("s_mov_b32 s%d, 256" % (SRD_O + 2))
    a("s_lshl_b32 s94, s%d, 3" % sWAVE)
    a("v_mov_b32 v1, 0")
    a("s_mov_b64 exec, 1")
    a("s_not_b32 s95, s40")
    sel0 = [None, 0, 3, 4, 7, 9, 10, 11]
    sel4 = [1, 4, 5, 6, 8, 9, 10, 11]
    for i in range(8):
        a("s_cmp_eq_u32 s%d, 0" % sWAVE)
        a("s_cselect_b32 s96, %s, s%d" % ("s95" if sel0[i] is None else "s%d" % (40 + 2 * sel0[i]), 40 + 2 * sel4[i]))
        a("v_mov_b32 v4, s96")
        a("buffer_atomic_umax v4, v1, %s, s94 offen offset:%d sc1" % (srd(SRD_O), 4 * i))
        a("s_nop 1")
if int(opt["hold"]):
    if int(opt["holdx"]) >= 0:
        a("s_cmp_lg_u32 s%d, %d" % (sX8, int(opt["holdx"]))); a("s_cbranch_scc1 EXIT")
    a("s_add_u32 s40, s40, %d" % int(opt["hold"]))
    a("HOLD:")
    a("s_sleep 2")
    a("s_memrealtime s[42:43]"); a("s_waitcnt lgkmcnt(0)")
    a("s_sub_u32 s44, s42, s40"); a("s_cmp_lt_i32 s44, 0"); a("s_cbranch_scc1 HOLD")
a("EXIT:")
a("s_endpgm")
emit_retries()
a("V_REMOTE:")
a("s_add_u32 s95, s95, 0x%x" % (RB - RA)); a("s_add_u32 s96, s96, 0x%x" % (RB - RA))
a("s_mov_b64 exec, s[92:93]")
a("buffer_store_dwordx4 %s, v6, %s, s95 offen sc1" % (v4(STT), srd(SRD_WS)))
a("s_mov_b64 exec, -1")
a("s_nop 7")
o_epilogue()
a("buffer_store_dwordx4 %s, v7, %s, s96 offen sc1" % (v4(OO), srd(SRD_WS)))
a("s_branch V_PUB")
lines = hazard.fix(a.lines)
body = "\n".join(lines) + "\n"
body += ".fill 2600, 4, 0xbf810000\n"
open(sys.argv[1], "w").write(wrap(body, 256, 512, LDS_BYTES, vgpr=216))
```

```python
import sys, math, struct
from asmlib import *
import hazard
opt = dict(stamps="0", pol="nt", local="1", spin="20000", n1="6", b1wait="63", wfirst="0", warm="1", slp="1", rpol="sc1", rpipe="0", rslp="1", b2b="0", hold="0", holdx="-1", holdat="")
for x in sys.argv[2:]:
    k, v = x.split("="); opt[k] = v
POL = {"nt": " nt", "none": "", "sc1nt": " sc1 nt"}[opt["pol"]]
RPOL = {"sc1": " sc1", "sys": " sc0 sc1"}[opt["rpol"]]
STAMPS = int(opt["stamps"]); SPIN = int(opt["spin"]); N1 = int(opt["n1"]); WFIRST = int(opt["wfirst"]); SLP = int(opt["slp"])

QP, HP, RA, RB, STO, FP = 0x10000, 0x90000, 0x100000, 0x200000, 0x80000, 0x300000
LT0, LT1, LW, LW2, LQ, LS, LRED, LFLAG = 0, 14336, 28672, 45056, 53248, 54272, 55296, 59392
LDS_BYTES = 98304
sWAVE, sX8, sR, sB, sS, sTAG, sSPIN, sXCC, sTGX = 3, 28, 29, 30, 31, 32, 33, 34, 35
SRD_X, SRD_KV, SRD_T, SRD_W2, SRD_WS, SRD_O = 4, 8, 12, 16, 20, 24
pX, pK, pV, pWQ, pWO, pW1, pB1, pW2, pOUT, pWS = 64, 66, 68, 70, 72, 76, 78, 80, 82, 86
sM1, sM2, sM3 = 88, 90, 92
LOG2E = 1.4426950408889634
def f2u(f): return struct.unpack("<I", struct.pack("<f", f))[0]
def srd(n): return "s[%d:%d]" % (n, n + 3)
def sp(n): return "s[%d:%d]" % (n, n + 1)
def v4(n): return "v[%d:%d]" % (n, n + 3)
def v2(n): return "v[%d:%d]" % (n, n + 1)
DPPM = " row_mask:0xf bank_mask:0xf"
MF = "v_mfma_f32_16x16x32_bf16"

a = Asm()
ROLE = ["V"]
def stamp(i):
    if opt["holdat"] == "%s%d" % (ROLE[0], i):
        a("s_memrealtime s[40:41]"); a("s_waitcnt lgkmcnt(0)")
    if STAMPS and i < 12:
        a("s_memrealtime s[%d:%d]" % (40 + 2 * i, 41 + 2 * i)); a("s_waitcnt lgkmcnt(0)")
def rows_allreduce(op, xs, ts):
    for sw in ("v_permlane16_swap_b32", "v_permlane32_swap_b32"):
        for x, t in zip(xs, ts): a("v_mov_b32 v%d, v%d" % (t, x))
        for x, t in zip(xs, ts): a("%s v%d, v%d" % (sw, x, t))
        for x, t in zip(xs, ts): a("%s v%d, v%d, v%d" % (op, x, x, t))
def dpp_red(op, x, ctrl): a("%s_dpp v%d, v%d, v%d %s%s" % (op, x, x, x, ctrl, DPPM))
def bf16_round(x):
    a("v_cvt_pk_bf16_f32 v%d, v%d, v%d" % (x, x, x)); a("v_lshlrev_b32 v%d, 16, v%d" % (x, x))
def check_tags(eq, xo=()):
    for t in eq: a("v_cmpx_eq_u32 vcc, s%d, v%d" % (sTAG, t))
    for t in xo:
        a("v_xor_b32 v%d, s%d, v%d" % (t, sTAG, t)); a("v_cmpx_gt_u32 vcc, 16, v%d" % t)
    a("s_cmp_eq_u64 exec, -1")
    a("s_mov_b64 exec, -1")
RETRY = []
def poll_check(name, issue, eq, xo=(), sleep=None):
    a("%s_chk:" % name)
    check_tags(eq, xo)
    a("s_cbranch_scc0 %s_retry" % name)
    a("%s_ok:" % name)
    a("s_nop 2")
    RETRY.append((name, issue, sleep))
def emit_retries():
    for name, issue, sleep in RETRY:
        a("%s_retry:" % name)
        a("s_cmp_eq_u32 s%d, 0" % sSPIN)
        a("s_cbranch_scc1 %s_ok" % name)
        a("s_sub_u32 s%d, s%d, 1" % (sSPIN, sSPIN))
        if sleep: a("s_sleep %d" % sleep)
        issue()
        a("s_waitcnt vmcnt(0)")
        a("s_branch %s_chk" % name)
def make_tag():
    a("s_waitcnt lgkmcnt(0)")
    a("s_mul_i32 s%d, s%d, 1664525" % (sTAG, sTAG)); a("s_add_u32 s%d, s%d, 1013904223" % (sTAG, sTAG))
def tr_addrs():
    a("v_lshrrev_b32 v12, 2, v0"); a("v_lshlrev_b32 v12, 7, v12"); a("v_lshl_add_u32 v12, v5, 3, v12")
    a("v_and_b32 v13, 3, v11"); a("v_lshl_add_u32 v12, v13, 5, v12")
    for tp in range(1, 4): a("v_xor_b32 v%d, %d, v12" % (12 + tp, 32 * tp))

a("s_cmp_ge_u32 s2, 256")
a("s_cbranch_scc1 EXIT")
if STAMPS or int(opt["hold"]): a("s_memrealtime s[40:41]")
a("s_load_dwordx16 s[64:79], s[0:1], 0")
a("s_load_dwordx8 s[80:87], s[0:1], 64")
a("s_getpc_b64 s[36:37]")
a("v_mul_u32_u24 v1, 20, v0")
a("global_load_dword v215, v1, s[36:37]")
a("v_lshrrev_b32 v1, 6, v0")
a("v_and_b32 v0, 63, v0")
a("v_readfirstlane_b32 s%d, v1" % sWAVE)
a("s_and_b32 s%d, s2, 7" % sX8)
a("s_lshr_b32 s%d, s2, 3" % sR)
a("s_lshr_b32 s%d, s2, 6" % sB)
a("s_bfe_u32 s%d, s2, 0x30003" % sS)
a("s_getreg_b32 s%d, hwreg(HW_REG_XCC_ID, 0, 4)" % sXCC)
a("s_mov_b32 s%d, %d" % (sSPIN, SPIN))
for n, size in ((SRD_X, 3584), (SRD_KV, 1 << 26), (SRD_T, 448 * 8192), (SRD_W2, 1792 * 896), (SRD_WS, 1 << 28), (SRD_O, 3584)):
    a("s_mov_b32 s%d, 0x%x" % (n + 2, size)); a("s_mov_b32 s%d, 0x20000" % (n + 3))
a("s_lshl_b32 s36, s%d, 3" % sB); a("s_add_u32 s36, s36, s%d" % sX8); a("s_lshl_b32 s36, s36, 21")
a("s_lshl_b32 s37, s%d, 16" % sS); a("s_add_u32 s36, s36, s37"); a("s_add_u32 s36, s36, %d" % (3072 * 512))
a("v_lshrrev_b32 v4, 4, v0"); a("v_and_b32 v5, 3, v0"); a("v_bfe_u32 v3, v0, 2, 2"); a("v_lshrrev_b32 v11, 3, v0")
a("v_lshlrev_b32 v10, 1, v4"); a("v_xor_b32 v10, v10, v0"); a("v_and_b32 v10, 7, v10"); a("v_lshlrev_b32 v10, 4, v10")
a("s_lshl_b32 s39, s%d, 5" % sX8); a("s_add_u32 s39, s39, s%d" % sR)
a("s_cmp_lg_u32 s%d, 0" % sWAVE)
a("s_cbranch_scc1 NOTW0")
XS, XF = 84, 100
a("s_setprio 3")
a("s_mul_i32 s98, s%d, %d" % (sB, 112 * 8192)); a("s_lshl_b32 s97, s%d, 10" % sX8); a("s_add_u32 s98, s98, s97")
a("s_lshl_b32 s97, s%d, 7" % sS); a("s_add_u32 s98, s98, s97")
a("s_mul_i32 s99, s%d, %d" % (sB, 112 * 3584)); a("s_mul_i32 s97, s%d, 448" % sX8); a("s_add_u32 s99, s99, s97")
a("s_lshl_b32 s97, s%d, 6" % sS); a("s_add_u32 s99, s99, s97")
a("s_cmp_eq_u32 s%d, 7" % sS); a("s_cselect_b32 s99, 0x40000000, s99")
a("v_mul_u32_u24 v6, 896, v3"); a("v_lshl_add_u32 v7, v4, 2, v5")
a("v_lshl_add_u32 v8, v4, 3, v6"); a("v_lshl_add_u32 v1, v7, 3, v6"); a("v_lshl_add_u32 v6, v7, 4, v6")
a("v_lshl_add_u32 v9, v11, 13, v10")
a("v_lshrrev_b32 v2, 2, v0"); a("v_mul_u32_u24 v2, 3584, v2"); a("v_and_b32 v7, 48, v10"); a("v_add_u32 v2, v2, v7")
a("s_mul_i32 s37, s%d, 224" % sB)
a("s_mov_b32 m0, %d" % LT0)
a("v_mov_b32 v16, 0"); a("v_mov_b32 v17, 0")
a("ds_write_b64 v16, v[16:17] offset:%d" % LFLAG); a("ds_write_b64 v16, v[16:17] offset:%d" % (LFLAG + 8))
a("s_waitcnt lgkmcnt(0)")
a("s_mov_b64 %s, %s" % (sp(SRD_T), sp(pWQ)))
a("s_mov_b64 %s, %s" % (sp(SRD_X), sp(pX)))
a("s_mov_b64 %s, %s" % (sp(SRD_W2), sp(pW1)))
for t in range(14):
    a("buffer_load_dwordx4 v9, %s, s98 offen%s lds" % (srd(SRD_T), POL))
    if t == 1:
        for i in range(3): a("buffer_load_dwordx4 %s, v6, %s, 0 offen offset:%d" % (v4(XS + 4 * i), srd(SRD_X), 256 * i))
        a("buffer_load_dwordx2 %s, v1, %s, 0 offen offset:768" % (v2(XS + 12), srd(SRD_X)))
        for m in range(7): a("buffer_load_dwordx2 %s, v8, %s, s37 offen offset:%d" % (v2(XF + 2 * m), srd(SRD_X), 32 * m))
    a("s_add_u32 m0, m0, 1024")
    if t < 13: a("s_add_u32 s98, s98, %d" % (8 * 8192))
for t in range(7):
    a("buffer_load_dwordx4 v2, %s, s99 offen%s lds" % (srd(SRD_W2), POL))
    if t < 6: a("s_add_u32 m0, m0, 1024"); a("s_add_u32 s99, s99, %d" % (16 * 3584))
a("s_load_dword s%d, %s, 0" % (sTAG, sp(pWS)))
a("s_mov_b64 %s, %s" % (sp(SRD_WS), sp(pWS)))
a("s_mov_b64 %s, %s" % (sp(SRD_KV), sp(pV)))
a("s_branch V_PROJ")

a("NOTW0:")
a("s_cmp_ge_u32 s%d, 4" % sWAVE)
a("s_waitcnt lgkmcnt(0)")
a("s_load_dword s%d, %s, 0" % (sTAG, sp(pWS)))
a("s_mov_b64 %s, %s" % (sp(SRD_WS), sp(pWS)))
a("s_cselect_b64 %s, %s, %s" % (sp(SRD_KV), sp(pK), sp(pV)))
a("s_cbranch_scc1 KWAVE")
if opt["warm"] == "1":
    a("s_lshl_b32 s94, s39, 11"); a("s_lshl_b32 s95, s%d, 10" % sWAVE); a("s_add_u32 s94, s94, s95"); a("s_add_u32 s94, s94, 0x%x" % (RA - 1024))
    a("s_lshl_b32 s95, s%d, 10" % sX8); a("s_add_u32 s95, s95, 0x%x" % (RA + STO))
    a("s_cmp_eq_u32 s%d, 3" % sWAVE); a("s_cselect_b32 s94, s95, s94")
    a("v_lshlrev_b32 v1, 4, v0")
a("s_barrier")
if opt["warm"] == "1":
    a("buffer_load_dwordx4 v[212:215], v1, %s, s94 offen sc1" % srd(SRD_WS))
make_tag()
a("s_branch V_B2")

a("KWAVE:")
ROLE[0] = "K"
KR = 16
a("s_sub_u32 s%d, s%d, 4" % (sWAVE, sWAVE))
a("s_setprio 2")
a("v_lshlrev_b32 v1, 11, v3"); a("v_lshl_add_u32 v1, v4, 6, v1"); a("v_lshl_add_u32 v1, v5, 4, v1")
a("s_lshl_b32 s37, s%d, 14" % sWAVE); a("s_add_u32 s36, s36, s37")
a("s_lshr_b32 s38, s%d, 1" % sWAVE); a("s_lshl_b32 s38, s38, 13"); a("s_add_u32 s36, s36, s38"); a("s_xor_b32 s37, s36, 8192")
a("s_barrier")
def kload(i):
    G, t, u = i >> 3, (i >> 1) & 3, i & 1
    a("buffer_load_dwordx4 %s, v1, %s, s%d offen offset:%d%s" % (v4(KR + 4 * i), srd(SRD_KV), 36 + G, t * 512 + u * 256, POL))
for i in range(N1): kload(i)
stamp(1)
a("s_branch K_MAIN")

a("V_PROJ:")
ROLE[0] = "V"
tr_addrs()
a("s_mov_b32 s37, 0x3f803f80")
a("v_mov_b32 v6, 0"); a("v_mov_b32 v7, 0")
WF, DT, PB = 116, 180, 196
for r in [XF + 14, XF + 15] + [WF + 16 * tp + k for tp in range(4) for k in (14, 15)]: a("v_mov_b32 v%d, 0" % r)
for nn, val in ((sM1, 0x22222222), (sM2, 0x44444444), (sM3, 0x88888888)):
    a("s_mov_b32 s%d, 0x%x" % (nn, val)); a("s_mov_b32 s%d, 0x%x" % (nn + 1, val))
a("v_lshlrev_b32 v2, 6, v4"); a("v_lshl_add_u32 v2, v5, 4, v2")
a("v_lshl_add_u32 v1, v3, 9, v2")
a("v_lshl_add_u32 v2, v3, 8, v2")
a("v_lshrrev_b32 v80, 2, v0"); a("v_lshlrev_b32 v80, 6, v80"); a("v_lshl_add_u32 v80, v5, 3, v80")
a("v_and_b32 v81, 1, v4"); a("v_lshl_add_u32 v80, v81, 5, v80"); a("v_xor_b32 v81, 32, v80")
a("s_lshl_b32 s98, s39, 11"); a("s_add_u32 s98, s98, 0x%x" % QP)
a("s_lshl_b32 s99, s39, 10"); a("s_add_u32 s99, s99, 0x%x" % HP)
if int(opt["b1wait"]) < 63: a("s_waitcnt vmcnt(%d)" % int(opt["b1wait"]))
a("s_barrier")
stamp(1)
a("s_waitcnt vmcnt(26)")
for i in range(14):
    a("v_dot2c_f32_bf16 v6, s37, v%d" % (XS + i)); a("v_dot2c_f32_bf16 v7, v%d, v%d" % (XS + i, XS + i))
for x in (6, 7): dpp_red("v_add_f32", x, "quad_perm:[1,0,3,2]")
for x in (6, 7): dpp_red("v_add_f32", x, "quad_perm:[2,3,0,1]")
rows_allreduce("v_add_f32", (6, 7), (8, 9))
a("v_mul_f32 v6, 0x%x, v6" % f2u(1.0 / 448)); a("v_mul_f32 v7, 0x%x, v7" % f2u(1.0 / 448))
a("v_fma_f32 v7, -v6, v6, v7"); a("v_max_f32 v7, 0, v7")
bf16_round(7); a("v_add_f32 v7, 0x%x, v7" % f2u(1e-5)); bf16_round(7)
a("v_sqrt_f32 v7, v7"); bf16_round(6); bf16_round(7); a("v_rcp_f32 v7, v7")
a("s_waitcnt vmcnt(19)")
a("v_mul_f32 v6, v6, v7")
for i in range(14):
    r = XF + i; t = XS + 2 * (i & 1)
    a("v_lshlrev_b32 v%d, 16, v%d" % (t, r)); a("v_and_b32 v%d, 0xffff0000, v%d" % (t + 1, r))
    a("v_fma_f32 v%d, v%d, v7, -v6" % (t, t)); a("v_fma_f32 v%d, v%d, v7, -v6" % (t + 1, t + 1))
    a("v_cvt_pk_bf16_f32 v%d, v%d, v%d" % (r, t, t + 1))
make_tag()
a("s_xor_b32 s%d, s%d, s%d" % (sTGX, sTAG, sXCC))
for i in (1, 5, 9): a("v_mov_b32 v%d, s%d" % (PB + i, sTAG))
for i in (3, 7, 11): a("v_mov_b32 v%d, s%d" % (PB + i, sTGX))
stamp(2)
a("s_waitcnt vmcnt(7)")
stamp(3)
def proj_mfma(q, d):
    for u in range(4): a("%s %s, %s, %s, %s" % (MF, v4(d), v4(WF + 16 * q + 4 * u), v4(XF + 4 * u), "0" if u == 0 else v4(d)))
for tp in range(4):
    for m in range(7): a("ds_read_b64_tr_b16 %s, v%d offset:%d" % (v2(WF + 16 * tp + 2 * m), 12 + tp, LT0 + 2048 * m))
    if tp >= 1:
        a("s_waitcnt lgkmcnt(7)"); proj_mfma(tp - 1, DT + 4 * (tp - 1))
a("s_waitcnt lgkmcnt(0)")
proj_mfma(3, DT + 12)
for r in range(4): a("v_cndmask_b32 v%d, v%d, v%d, %s" % (PB + 2 * r, DT + r, DT + 4 + r, sp(sM1)))
for r in range(4): a("v_cndmask_b32 v%d, v%d, v%d, %s" % (PB + 2 * r, PB + 2 * r, DT + 8 + r, sp(sM2)))
for r in range(4): a("v_cndmask_b32 v%d, v%d, v%d, %s" % (PB + 2 * r, PB + 2 * r, DT + 12 + r, sp(sM3)))
a("buffer_store_dwordx4 %s, v1, %s, s98 offen sc1" % (v4(PB), srd(SRD_WS)))
a("buffer_store_dwordx4 %s, v1, %s, s98 offen offset:256 sc1" % (v4(PB + 4), srd(SRD_WS)))
a("s_waitcnt vmcnt(2)")
for tp in range(2):
    for m in range(7): a("ds_read_b64_tr_b16 %s, v%d offset:%d" % (v2(WF + 16 * tp + 2 * m), 80 + tp, LT1 + 1024 * m))
a("s_waitcnt lgkmcnt(7)"); proj_mfma(0, DT)
a("s_waitcnt lgkmcnt(0)"); proj_mfma(1, DT + 4)
for k in range(2):
    a("v_cndmask_b32 v%d, v%d, v%d, %s" % (PB + 8 + 2 * k, DT + k, DT + 2 + k, sp(sM2)))
for k in range(2):
    a("v_cndmask_b32 v%d, v%d, v%d, %s" % (PB + 8 + 2 * k, PB + 8 + 2 * k, DT + 4 + k, sp(sM1)))
for k in range(2):
    a("v_cndmask_b32 v%d, v%d, v%d, %s" % (PB + 8 + 2 * k, PB + 8 + 2 * k, DT + 6 + k, sp(sM3)))
a("buffer_store_dwordx4 %s, v2, %s, s99 offen sc1" % (v4(PB + 8), srd(SRD_WS)))
a("s_setprio 0")
a("V_B2:")
stamp(4)
a("s_barrier")
VR, VF, DV = 16, 80, 144
a("v_lshlrev_b32 v1, 12, v11"); a("v_and_b32 v6, 7, v0"); a("v_lshl_add_u32 v1, v6, 4, v1")
a("s_lshl_b32 s37, s%d, 7" % sWAVE); a("s_add_u32 s36, s36, s37"); a("s_add_u32 s37, s36, 32768")
a("s_mov_b32 s98, 0x05040100"); a("s_mov_b32 s99, 0x07060302")
a("v_bfe_u32 v6, v0, 2, 1"); a("v_lshlrev_b32 v8, 9, v6"); a("v_lshl_add_u32 v8, v4, 6, v8")
a("v_and_b32 v7, 1, v0"); a("v_lshl_add_u32 v8, v7, 5, v8"); a("v_lshlrev_b32 v6, 9, v6")
SS, PFR, STT, TT, OO = 176, 192, 200, 204, 208
a("s_lshl_b32 s95, s%d, 10" % sX8); a("s_lshl_b32 s96, s%d, 4" % sR); a("s_add_u32 s95, s95, s96"); a("s_add_u32 s95, s95, 0x%x" % (RA + STO))
a("s_lshl_b32 s96, s%d, 16" % sX8); a("s_lshl_b32 s97, s%d, 13" % sWAVE); a("s_add_u32 s96, s96, s97")
a("s_lshr_b32 s97, s%d, 2" % sS); a("s_lshl_b32 s97, s97, 11"); a("s_add_u32 s96, s96, s97")
a("s_lshl_b32 s97, s%d, 6" % sB); a("s_add_u32 s96, s96, s97"); a("s_and_b32 s97, s%d, 3" % sS); a("s_lshl_b32 s97, s97, 4"); a("s_add_u32 s96, s96, s97")
a("s_add_u32 s96, s96, 0x%x" % RA)
a("v_bfe_u32 v9, v0, 4, 1"); a("v_lshlrev_b32 v9, 15, v9"); a("v_lshl_add_u32 v9, v7, 9, v9")
a("v_bfe_u32 v7, v0, 2, 1"); a("v_lshl_add_u32 v9, v7, 12, v9"); a("v_bfe_u32 v7, v0, 1, 1"); a("v_lshl_add_u32 v9, v7, 10, v9")
a("v_bfe_u32 v7, v0, 3, 1"); a("v_lshl_add_u32 v7, v7, 8, v9")
a("v_mov_b32 v2, 0")
a("s_mov_b32 s100, 0x%x" % f2u(LOG2E / 16))
if opt["b2b"] == "1": a("s_barrier")
stamp(5)
for i in range(16):
    a("buffer_load_dwordx4 %s, v1, %s, s%d offen offset:%d%s" % (v4(VR + 4 * i), srd(SRD_KV), 36 + (i >> 3), 512 * (i & 7), POL))
for r in (STT + 1, STT + 3, OO + 1, OO + 3): a("v_mov_b32 v%d, s%d" % (r, sTAG))
a("s_bitcmp1_b32 s%d, 0" % sWAVE); a("s_cselect_b32 s92, 16, 1"); a("s_mov_b32 s93, 0")
stamp(6)
a("s_barrier")
stamp(7)
def vperm(pair):
    G, i = pair >> 2, pair & 3
    for m in range(4):
        A = VR + 4 * (2 * pair) + m; B = A + 4
        a("v_perm_b32 v%d, v%d, v%d, s98" % (VF + 32 * G + 4 * (2 * m) + i, B, A))
        a("v_perm_b32 v%d, v%d, v%d, s99" % (VF + 32 * G + 4 * (2 * m + 1) + i, B, A))
for k, off in enumerate((0, 16, 256, 272)): a("ds_read_b128 %s, v8 offset:%d" % (v4(SS + 4 * k), LS + off))
a("ds_read_b128 %s, v2 offset:%d" % (v4(TT), LFLAG))
a("s_waitcnt lgkmcnt(0)")
a("v_min3_u32 v2, v%d, v%d, v%d" % (TT, TT + 1, TT + 2)); a("v_min_u32 v2, v2, v%d" % (TT + 3))
a("v_readfirstlane_b32 s101, v2")
a("v_max3_f32 v8, v%d, v%d, v%d" % (SS, SS + 1, SS + 2)); a("v_max3_f32 v9, v%d, v%d, v%d" % (SS + 3, SS + 4, SS + 5))
a("v_max3_f32 v8, v8, v%d, v%d" % (SS + 6, SS + 7)); a("v_max3_f32 v9, v9, v%d, v%d" % (SS + 8, SS + 9))
a("v_max3_f32 v8, v8, v%d, v%d" % (SS + 10, SS + 11)); a("v_max3_f32 v9, v9, v%d, v%d" % (SS + 12, SS + 13))
a("v_max3_f32 v8, v8, v%d, v%d" % (SS + 14, SS + 15)); a("v_max_f32 v8, v8, v9")
dpp_red("v_max_f32", 8, "quad_perm:[1,0,3,2]")
rows_allreduce("v_max_f32", (8,), (9,))
a("v_mul_f32 v%d, s100, v8" % STT)
for k in range(16): a("v_fma_f32 v%d, v%d, s100, -v%d" % (SS + k, SS + k, STT))
for k in range(16): a("v_exp_f32 v%d, v%d" % (SS + k, SS + k))
for k in range(8): a("v_cvt_pk_bf16_f32 v%d, v%d, v%d" % (PFR + k, SS + 2 * k, SS + 2 * k + 1))
for k in range(8): a("v_add_f32 v%d, v%d, v%d" % (SS + k, SS + k, SS + 8 + k))
for k in range(4): a("v_add_f32 v%d, v%d, v%d" % (SS + k, SS + k, SS + 4 + k))
a("v_add_f32 v%d, v%d, v%d" % (SS, SS, SS + 2)); a("v_add_f32 v%d, v%d, v%d" % (SS + 1, SS + 1, SS + 3))
a("v_add_f32 v%d, v%d, v%d" % (STT + 2, SS, SS + 1))
dpp_red("v_add_f32", STT + 2, "quad_perm:[1,0,3,2]")
rows_allreduce("v_add_f32", (STT + 2,), (9,))
def pv_mfma(G):
    for j in range(8): a("%s %s, %s, %s, %s" % (MF, v4(DV + 4 * j), v4(PFR + 4 * G), v4(VF + 32 * G + 4 * j), "0" if G == 0 else v4(DV + 4 * j)))
for p in range(8):
    a("s_waitcnt vmcnt(%d)" % (16 - 2 * (p + 1))); vperm(p)
    if p == 3: pv_mfma(0)
stamp(8)
pv_mfma(1)
a("s_cmp_eq_u32 s101, %d" % (2 if opt["local"] == "1" else 3))
a("s_cbranch_scc0 V_REMOTE")
a("s_mov_b64 exec, s[92:93]")
a("buffer_store_dwordx4 %s, v6, %s, s95 offen" % (v4(STT), srd(SRD_WS)))
a("s_mov_b64 exec, -1")
def o_epilogue():
    for j in range(4): a("v_add_f32_dpp v%d, v%d, v%d row_ror:8 row_mask:0xf bank_mask:0x3" % (TT + j, DV + 4 * j + 1, DV + 4 * j))
    for j in range(4, 8): a("v_add_f32_dpp v%d, v%d, v%d row_ror:8 row_mask:0xf bank_mask:0xc" % (TT + j - 4, DV + 4 * j, DV + 4 * j + 1))
    a("v_cvt_pk_bf16_f32 v%d, v%d, v%d" % (OO, TT, TT + 1)); a("v_cvt_pk_bf16_f32 v%d, v%d, v%d" % (OO + 2, TT + 2, TT + 3))
    a("s_mov_b32 exec_hi, 0")
o_epilogue()
a("buffer_store_dwordx4 %s, v7, %s, s96 offen" % (v4(OO), srd(SRD_WS)))
a("V_PUB:")
a("s_mov_b64 exec, -1")
stamp(9)
a("s_cmp_ge_u32 s%d, 28" % sR)
a("s_cbranch_scc1 FINISH")
a("s_barrier")
a("s_cmp_eq_u32 s%d, 0" % sWAVE)
a("s_cbranch_scc1 REDUCER")
a("s_barrier")
a("s_branch FINISH")
a("REDUCER:")
a("s_lshr_b32 s94, s2, 5"); a("s_and_b32 s95, s2, 31")
a("s_mov_b64 %s, %s" % (sp(SRD_O), sp(pOUT)))
a("s_bfe_u32 s96, s2, 0x20002"); a("s_mul_i32 s96, s96, 896"); a("s_lshl_b32 s97, s94, 7"); a("s_add_u32 s96, s96, s97")
a("s_bfe_u32 s97, s2, 0x10004"); a("s_lshl_b32 s97, s97, 6"); a("s_add_u32 s96, s96, s97")
a("s_and_b32 s97, s2, 3"); a("s_lshl_b32 s97, s97, 3"); a("s_add_u32 s96, s96, s97")
a("v_lshlrev_b32 v6, 1, v5")
a("buffer_load_ushort v16, v6, %s, s96 offen" % srd(SRD_X)); a("buffer_load_ushort v17, v6, %s, s96 offen offset:32" % srd(SRD_X))
a("v_lshrrev_b32 v7, 2, v0"); a("v_lshlrev_b32 v7, 11, v7"); a("v_lshl_add_u32 v7, v5, 4, v7")
a("s_lshl_b32 s97, s94, 16"); a("s_lshl_b32 s98, s95, 6"); a("s_add_u32 s97, s97, s98"); a("s_add_u32 s97, s97, 0x%x" % FP); a("s_add_u32 s98, s97, 32768")
a("s_barrier")
def issue_r(st=0):
    for y in range(2): a("buffer_load_dwordx4 %s, v7, %s, s%d offen%s" % (v4(20 + 8 * st + 4 * y), srd(SRD_WS), 97 + y, RPOL))
RS = int(opt["rslp"])
if opt["rpipe"] == "1":
    NS = 3
    for st in range(NS - 1):
        issue_r(st)
        if RS: a("s_sleep %d" % RS)
    a("PR:")
    for st in range(NS):
        issue_r((st + NS - 1) % NS)
        a("s_waitcnt vmcnt(%d)" % (2 * (NS - 1)))
        check_tags([21 + 8 * st, 23 + 8 * st, 25 + 8 * st, 27 + 8 * st])
        a("v_add_f32 v18, v%d, v%d" % (20 + 8 * st, 24 + 8 * st)); a("v_add_f32 v19, v%d, v%d" % (22 + 8 * st, 26 + 8 * st))
        a("s_cbranch_scc1 PR_ok")
        if RS: a("s_sleep %d" % RS)
    a("s_sub_u32 s%d, s%d, 1" % (sSPIN, sSPIN))
    a("s_cbranch_scc0 PR")
    a("PR_ok:")
else:
    issue_r(); a("s_waitcnt vmcnt(0)")
    poll_check("PR", issue_r, [21, 23, 25, 27], sleep=RS)
    a("v_add_f32 v18, v20, v24"); a("v_add_f32 v19, v22, v26")
stamp(10)
a("v_lshlrev_b32 v16, 16, v16"); a("v_lshlrev_b32 v17, 16, v17")
a("s_nop 0")
for x in (18, 19): dpp_red("v_add_f32", x, "row_ror:4")
for x in (18, 19): dpp_red("v_add_f32", x, "row_ror:8")
rows_allreduce("v_add_f32", (18, 19), (8, 9))
a("v_add_f32 v18, v18, v16"); a("v_add_f32 v19, v19, v17")
a("v_cvt_pk_bf16_f32 v18, v18, v19")
a("s_mov_b64 exec, 0xf")
a("buffer_store_short v18, v6, %s, s96 offen" % srd(SRD_O))
a("buffer_store_short_d16_hi v18, v6, %s, s96 offen offset:32" % srd(SRD_O))
a("s_mov_b64 exec, -1")
a("s_cmp_lg_u32 s2, 0")
a("s_cbranch_scc1 FINISH")
a("v_mov_b32 v8, s%d" % sTAG); a("v_mov_b32 v9, 0")
a("s_mov_b64 exec, 1")
a("buffer_store_dword v8, v9, %s, 0 offen sc1" % srd(SRD_WS))
a("s_mov_b64 exec, -1")
a("s_branch FINISH")

a("K_MAIN:")
ROLE[0] = "K"
a("s_and_b32 s88, s%d, 3" % sR); a("s_lshr_b32 s89, s%d, 2" % sR)
a("s_mov_b64 %s, %s" % (sp(SRD_T), sp(pWO))); a("s_mov_b64 %s, %s" % (sp(SRD_W2), sp(pW2))); a("s_mov_b64 %s, %s" % (sp(SRD_O), sp(pB1)))
a("s_lshl_b32 s92, s%d, 12" % sWAVE)
a("s_lshl_b32 s90, s%d, 2" % sWAVE); a("s_add_u32 s90, s90, s88")
a("s_mul_i32 s91, s%d, 7" % sX8); a("s_add_u32 s91, s91, s90")
a("s_cmp_ge_u32 s%d, 28" % sR); a("s_cselect_b32 s90, 7, s90")
a("s_lshl_b32 s64, s%d, 4" % sX8); a("s_lshl_b32 s97, s88, 2"); a("s_add_u32 s64, s64, s97"); a("s_add_u32 s64, s64, s%d" % sWAVE)
a("s_mul_i32 s64, s64, %d" % (32 * 896)); a("s_lshl_b32 s97, s89, 7"); a("s_add_u32 s64, s64, s97")
a("s_mul_i32 s65, s91, %d" % (32 * 896)); a("s_add_u32 s65, s65, s97")
a("s_lshl_b32 s94, s%d, 16" % sX8); a("s_add_u32 s94, s94, s92")
a("s_lshl_b32 s95, s%d, 9" % sB); a("s_add_u32 s94, s94, s95"); a("s_add_u32 s94, s94, 0x%x" % QP)
for k in range(1, 4): a("s_add_u32 s%d, s94, %d" % (94 + k, 16384 * k))
a("s_lshl_b32 s66, s%d, 5" % sX8); a("s_add_u32 s66, s66, s90"); a("s_lshl_b32 s66, s66, 10"); a("s_add_u32 s66, s66, 0x%x" % HP)
a("s_lshl_b32 s67, s91, 6")
a("s_lshl_b32 s68, s%d, 1" % sX8); a("s_lshr_b32 s99, s88, 1"); a("s_add_u32 s68, s68, s99"); a("s_lshl_b32 s68, s68, 9"); a("s_add_u32 s68, s68, 0x%x" % (RA + STO))
a("s_lshl_b32 s69, s%d, 16" % sX8); a("s_lshl_b32 s99, s88, 14"); a("s_add_u32 s69, s69, s99"); a("s_add_u32 s69, s69, s92"); a("s_add_u32 s69, s69, 0x%x" % RA)
for k in range(1, 4): a("s_add_u32 s%d, s66, %d" % (72 + k, 8192 * k))
a("s_lshl_b32 s71, s89, 5"); a("s_lshl_b32 s99, s%d, 2" % sX8); a("s_add_u32 s71, s71, s99"); a("s_add_u32 s71, s71, s88")
a("s_lshl_b32 s71, s71, 1"); a("s_add_u32 s71, s71, s%d" % sWAVE); a("s_lshl_b32 s71, s71, 10"); a("s_add_u32 s71, s71, 0x%x" % FP)
tr_addrs()
for tp in range(4): a("v_add_u32 v%d, s92, v%d" % (12 + tp, 12 + tp))
vWD, vQG, vQW, vQR, vSW, vBI, vHG, vST, vOG, vRW, vRR, vL16, vFL, vZ = 184, 185, 186, 187, 188, 189, 190, 191, 192, 193, 194, 195, 196, 197
a("v_mul_u32_u24 v%d, 896, v11" % vWD); a("v_add_u32 v%d, v%d, v10" % (vWD, vWD))
a("v_lshrrev_b32 v7, 5, v0"); a("v_bfe_u32 v9, v0, 4, 1")
a("v_lshlrev_b32 v6, 11, v7"); a("v_and_b32 v8, 31, v0"); a("v_lshl_add_u32 v%d, v8, 4, v6" % vQG)
a("v_lshlrev_b32 v6, 7, v7"); a("v_lshl_add_u32 v6, v5, 5, v6"); a("v_lshl_add_u32 v6, v3, 3, v6"); a("v_lshl_add_u32 v6, v9, 2, v6")
a("s_lshl_b32 s98, s%d, 8" % sWAVE); a("v_add_u32 v%d, s98, v6" % vQW)
a("v_bfe_u32 v6, v0, 2, 1"); a("v_lshlrev_b32 v6, 9, v6"); a("v_lshl_add_u32 v6, v4, 6, v6"); a("v_lshl_add_u32 v%d, v5, 4, v6" % vQR)
a("v_lshlrev_b32 v6, 9, v9"); a("v_lshl_add_u32 v6, v3, 4, v6"); a("s_lshl_b32 s98, s%d, 7" % sWAVE); a("s_lshr_b32 s99, s38, 7"); a("s_add_u32 s98, s98, s99")
a("v_add_u32 v%d, s98, v6" % vSW); a("v_xor_b32 v198, 64, v%d" % vSW)
a("v_and_b32 v6, 1, v0"); a("v_lshlrev_b32 v6, 5, v6"); a("v_lshl_add_u32 v6, v4, 3, v6"); a("v_bfe_u32 v8, v0, 1, 1"); a("v_lshl_add_u32 v%d, v8, 2, v6" % vBI)
a("v_lshlrev_b32 v6, 4, v5"); a("v_lshl_add_u32 v6, v3, 8, v6"); a("v_lshl_add_u32 v%d, v4, 6, v6" % vHG)
a("v_and_b32 v6, 7, v0"); a("v_lshl_add_u32 v6, v4, 3, v6"); a("v_lshlrev_b32 v%d, 4, v6" % vST)
a("v_lshlrev_b32 v%d, 4, v0" % vL16)
a("s_lshl_b32 s98, s%d, 10" % sWAVE); a("v_add_u32 v%d, s98, v%d" % (vRW, vL16))
a("s_lshl_b32 s98, s%d, 3" % sWAVE); a("v_add_u32 v%d, s98, v%d" % (vRR, vL16))
a("s_lshl_b32 s98, s%d, 2" % sWAVE); a("v_mov_b32 v%d, s98" % vFL); a("v_mov_b32 v%d, 0" % vZ)
ACC, PO = 156, 160
for i in range(4): a("v_mov_b32 v%d, 0" % (ACC + i))
make_tag()
a("v_mov_b32 v%d, s%d" % (PO + 1, sTAG)); a("v_mov_b32 v%d, s%d" % (PO + 3, sTAG))
QG, HB, HG, SG, OG = 84, 164, 168, 200, 100
def issue_q():
    for k in range(4): a("buffer_load_dwordx4 %s, v%d, %s, s%d offen sc1" % (v4(QG + 4 * k), vQG, srd(SRD_WS), 94 + k))
def issue_h():
    for k, so in enumerate((66, 73, 74, 75)): a("buffer_load_dwordx4 %s, v%d, %s, s%d offen sc1" % (v4(HG + 4 * k), vHG, srd(SRD_WS), so))
def issue_o():
    for hf in range(2):
        for z in range(2): a("buffer_load_dwordx4 %s, v%d, %s, s69 offen offset:%d sc1" % (v4(OG + 8 * hf + 4 * z), vL16, srd(SRD_WS), 2048 * hf + 1024 * z))
    a("buffer_load_dwordx4 %s, v%d, %s, s68 offen sc1" % (v4(SG), vST, srd(SRD_WS)))
def wdma(s, so):
    for t in range(4):
        a("buffer_load_dwordx4 v%d, %s, s%d offen%s lds" % (vWD, srd(s), so, POL))
        if t < 3: a("s_add_u32 m0, m0, 1024"); a("s_add_u32 s%d, s%d, %d" % (so, so, 8 * 896))
def issue_w(lbl):
    a("s_add_u32 m0, s92, %d" % LW)
    wdma(SRD_T, 64)
    a("s_cmp_ge_u32 s90, 7"); a("s_cbranch_scc1 %s" % lbl)
    a("s_add_u32 m0, s92, %d" % LW2)
    wdma(SRD_W2, 65)
    a("%s:" % lbl)
stamp(2)
a("s_barrier")
for i in range(N1, 16): kload(i)
a("s_cmp_ge_u32 s%d, 28" % sR); a("s_cbranch_scc1 K_NOH")
if WFIRST: issue_w("K_W1")
a("s_cmp_ge_u32 s90, 7"); a("s_cbranch_scc1 K_NOH")
a("buffer_load_dword v%d, v%d, %s, s67 offen" % (HB, vBI, srd(SRD_O)))
issue_h()
a("K_NOH:")
issue_q()
stamp(3)
if opt["b2b"] == "1": a("s_barrier")
a("s_waitcnt vmcnt(0)")
poll_check("PQ", issue_q, [QG + 4 * k + 1 for k in range(4)], [QG + 4 * k + 3 for k in range(4)], sleep=SLP)
stamp(4)
a("v_add_f32 v%d, v%d, v%d" % (QG, QG, QG + 4)); a("v_add_f32 v%d, v%d, v%d" % (QG + 2, QG + 2, QG + 6))
a("v_add_f32 v%d, v%d, v%d" % (QG + 8, QG + 8, QG + 12)); a("v_add_f32 v%d, v%d, v%d" % (QG + 10, QG + 10, QG + 14))
a("v_add_f32 v%d, v%d, v%d" % (QG, QG, QG + 8)); a("v_add_f32 v%d, v%d, v%d" % (QG + 2, QG + 2, QG + 10))
a("v_cvt_pk_bf16_f32 v%d, v%d, v%d" % (QG, QG, QG + 2))
a("ds_write_b32 v%d, v%d offset:%d" % (vQW, QG, LQ))
for k in range(4): a("v_cmpx_eq_u32 vcc, s%d, v%d" % (sXCC, QG + 4 * k + 3))
a("s_cmp_eq_u64 exec, -1"); a("s_mov_b64 exec, -1"); a("s_cselect_b32 s98, 2, 1")
a("v_mov_b32 v82, s98")
a("s_waitcnt lgkmcnt(0)")
a("ds_write_b32 v%d, v82 offset:%d" % (vFL, LFLAG))
a("s_mov_b32 s99, %d" % (SPIN * 16))
a("PF:")
a("ds_read_b128 %s, v%d offset:%d" % (v4(QG + 4), vZ, LFLAG))
a("s_waitcnt lgkmcnt(0)")
a("v_min3_u32 v82, v%d, v%d, v%d" % (QG + 4, QG + 5, QG + 6)); a("v_min_u32 v82, v82, v%d" % (QG + 7))
a("v_readfirstlane_b32 s101, v82")
a("s_cmp_lg_u32 s101, 0")
a("s_cbranch_scc1 PF_ok")
a("s_sub_u32 s99, s99, 1")
a("s_cbranch_scc0 PF")
a("PF_ok:")
QF = 92
a("ds_read_b128 %s, v%d offset:%d" % (v4(QF), vQR, LQ)); a("ds_read_b128 %s, v%d offset:%d" % (v4(QF + 4), vQR, LQ + 256))
DQ, SC = 116, 148
a("s_waitcnt lgkmcnt(0)")
for t in range(8): a("%s %s, %s, %s, 0" % (MF, v4(DQ + 4 * t), v4(QF), v4(KR + 8 * t)))
for t in range(8): a("%s %s, %s, %s, %s" % (MF, v4(DQ + 4 * t), v4(QF + 4), v4(KR + 8 * t + 4), v4(DQ + 4 * t)))
for r in range(4):
    for t in range(8):
        qp = "quad_perm:[%d,%d,%d,%d]" % (r, r, r, r)
        if r == 0: a("v_mov_b32_dpp v%d, v%d %s%s" % (SC + t, DQ + 4 * t, qp, DPPM))
        else: a("v_add_f32_dpp v%d, v%d, v%d %s%s" % (SC + t, DQ + 4 * t + r, SC + t, qp, DPPM))
a("ds_write_b128 v%d, %s offset:%d" % (vSW, v4(SC), LS)); a("ds_write_b128 v198, %s offset:%d" % (v4(SC + 4), LS))
a("s_cmp_eq_u32 s101, %d" % (2 if opt["local"] == "1" else 3)); a("s_cselect_b32 s98, 0, 0x%x" % (RB - RA))
for r in (68, 69): a("s_add_u32 s%d, s%d, s98" % (r, r))
a("s_waitcnt lgkmcnt(0)")
stamp(5)
a("s_barrier")
stamp(6)
a("s_cmp_ge_u32 s%d, 28" % sR)
a("s_cbranch_scc1 KFINISH")
if not WFIRST: issue_w("K_W2")
a("s_cmp_ge_u32 s90, 7")
a("s_cbranch_scc1 NOMLP1")
poll_check("PH", issue_h, [HG + 4 * k + 1 for k in range(4)], [HG + 4 * k + 3 for k in range(4)], sleep=SLP)
hv = [HG, HG + 2]
for x in hv:
    a("v_add_f32 v%d, v%d, v%d" % (x, x, x + 4)); a("v_add_f32 v%d, v%d, v%d" % (x + 8, x + 8, x + 12))
a("v_lshlrev_b32 v%d, 16, v%d" % (HG + 1, HB)); a("v_and_b32 v%d, 0xffff0000, v%d" % (HG + 3, HB))
for x in hv: a("v_add_f32 v%d, v%d, v%d" % (x, x, x + 8))
for x in hv: a("v_add_f32 v%d, v%d, v%d" % (x, x, x + 1))
a("s_mov_b32 s96, 0x%x" % f2u(-LOG2E))
T1, T2 = 16, 24
for k, x in enumerate(hv): a("v_mul_f32 v%d, s96, |v%d|" % (x + 1, x))
for k, x in enumerate(hv): a("v_exp_f32 v%d, v%d" % (x + 1, x + 1))
for k, x in enumerate(hv):
    a("v_cmp_lt_f32 vcc, 0, v%d" % x)
    a("v_mul_f32 v%d, v%d, v%d" % (T1 + k, x + 1, x + 1))
    a("v_cndmask_b32 v%d, 1.0, v%d, vcc" % (T2 + k, T1 + k))
    a("v_cndmask_b32_e64 v%d, v%d, 1.0, vcc" % (T1 + k, T1 + k))
    a("v_fma_f32 v%d, v%d, 2.0, v%d" % (T1 + k, x + 1, T1 + k))
    a("v_fma_f32 v%d, v%d, 2.0, v%d" % (T2 + k, T2 + k, T1 + k))
for k, x in enumerate(hv): a("v_rcp_f32 v%d, v%d" % (T2 + k, T2 + k))
for k, x in enumerate(hv): a("v_mul_f32 v%d, v%d, v%d" % (x, x, T1 + k))
for k, x in enumerate(hv): a("v_mul_f32 v%d, v%d, v%d" % (x, x, T2 + k))
AF = 80
a("v_cvt_pk_bf16_f32 v%d, v%d, v%d" % (HG, HG, HG + 2))
for k, src in enumerate((0, 2, 1, 3)): a("v_mov_b32_dpp v%d, v%d quad_perm:[%d,%d,%d,%d]%s" % (AF + k, HG, src, src, src, src, DPPM))
a("NOMLP1:")
WOF, W2F, DM, DO = 116, 132, 48, 16
def wfrags(lbl):
    for tp in range(4):
        for m in range(2): a("ds_read_b64_tr_b16 %s, v%d offset:%d" % (v2(WOF + 4 * tp + 2 * m), 12 + tp, LW + 2048 * m))
    a("s_cmp_ge_u32 s90, 7"); a("s_cbranch_scc1 %s" % lbl)
    for tp in range(4):
        for m in range(2): a("ds_read_b64_tr_b16 %s, v%d offset:%d" % (v2(W2F + 4 * tp + 2 * m), 12 + tp, LW2 + 2048 * m))
    a("s_waitcnt lgkmcnt(0)")
    for tp in range(4): a("%s %s, %s, %s, 0" % (MF, v4(DM + 4 * tp), v4(AF), v4(W2F + 4 * tp)))
    for tp in range(4): a("v_mov_b32 v%d, v%d" % (ACC + tp, DM + 4 * tp))
    a("%s:" % lbl)
if WFIRST: wfrags("NOMLP2")
stamp(7)
a("s_barrier")
stamp(8)
issue_o()
if not WFIRST:
    a("s_waitcnt vmcnt(5)")
    wfrags("NOMLP2")
a("s_waitcnt vmcnt(0)")
poll_check("PO", issue_o, [OG + 4 * k + j for k in range(4) for j in (1, 3)] + [SG + 1, SG + 3])
stamp(9)
for hf in range(2):
    o = OG + 8 * hf
    a("v_mov_b32 v%d, v%d" % (o + 1, o + 2)); a("v_mov_b32 v%d, v%d" % (o + 2, o + 4)); a("v_mov_b32 v%d, v%d" % (o + 3, o + 6))
a("v_mov_b32 v%d, v%d" % (SG + 1, SG))
a("s_waitcnt lgkmcnt(0)")
fops = [lambda: dpp_red("v_max_f32", SG + 1, "quad_perm:[1,0,3,2]"), lambda: dpp_red("v_max_f32", SG + 1, "quad_perm:[2,3,0,1]"),
        lambda: dpp_red("v_max_f32", SG + 1, "row_half_mirror"),
        lambda: (a("v_sub_f32 v%d, v%d, v%d" % (SG, SG, SG + 1)), a("v_exp_f32 v%d, v%d" % (SG, SG))),
        lambda: a("v_mul_f32 v%d, v%d, v%d" % (SG + 2, SG + 2, SG)),
        lambda: dpp_red("v_add_f32", SG + 2, "quad_perm:[1,0,3,2]"), lambda: dpp_red("v_add_f32", SG + 2, "quad_perm:[2,3,0,1]"),
        lambda: dpp_red("v_add_f32", SG + 2, "row_half_mirror")]
k = 0
for hf in range(2):
    for tp in range(4):
        a("%s %s, %s, %s, 0" % (MF, v4(DO + 16 * hf + 4 * tp), v4(OG + 8 * hf), v4(WOF + 4 * tp)))
        fops[k](); k += 1
a("v_rcp_f32 v%d, v%d" % (SG + 2, SG + 2)); a("v_mul_f32 v%d, v%d, v%d" % (SG, SG, SG + 2))
for hf in range(2):
    for r in range(4):
        for tp in range(4):
            a("v_fmac_f32_dpp v%d, v%d, v%d row_newbcast:%d%s" % (ACC + tp, SG, DO + 16 * hf + 4 * tp + r, 4 * hf + r, DPPM))
a("ds_write_b128 v%d, %s offset:%d" % (vRW, v4(ACC), LRED))
a("s_waitcnt lgkmcnt(0)")
a("s_barrier")
a("s_cmp_ge_u32 s%d, 2" % sWAVE)
a("s_cbranch_scc1 KFINISH")
for u in range(4): a("ds_read_b64 %s, v%d offset:%d" % (v2(16 + 2 * u), vRR, LRED + 1024 * u))
a("s_waitcnt lgkmcnt(0)")
a("v_add_f32 v16, v16, v18"); a("v_add_f32 v17, v17, v19"); a("v_add_f32 v20, v20, v22"); a("v_add_f32 v21, v21, v23")
a("v_add_f32 v%d, v16, v20" % PO); a("v_add_f32 v%d, v17, v21" % (PO + 2))
a("buffer_store_dwordx4 %s, v%d, %s, s71 offen%s" % (v4(PO), vL16, srd(SRD_WS), RPOL))
stamp(10)
a("KFINISH:")
if STAMPS: a("s_add_u32 s%d, s%d, 4" % (sWAVE, sWAVE))
a("FINISH:")
if STAMPS == 1:
    a("s_waitcnt vmcnt(0)")
    stamp(11)
    a("s_lshl_b32 s94, s2, 3"); a("s_add_u32 s94, s94, s%d" % sWAVE); a("s_lshl_b32 s94, s94, 7"); a("s_add_u32 s94, s94, 0x%x" % STAMP_OFF)
    a("v_mov_b32 v1, 0")
    a("s_mov_b64 exec, 1")
    for i in range(12):
        a("v_mov_b32 v4, s%d" % (40 + 2 * i)); a("v_mov_b32 v5, s%d" % (41 + 2 * i))
        a("buffer_store_dwordx2 v[4:5], v1, %s, s94 offen offset:%d" % (srd(SRD_WS), 8 * i))
        a("s_nop 1")
if STAMPS == 2:
    a("s_waitcnt vmcnt(0)")
    stamp(11)
    a("s_cmp_ge_u32 s%d, 28" % sR); a("s_cbranch_scc1 EXIT")
    a("s_and_b32 s94, s%d, 3" % sWAVE); a("s_cmp_lg_u32 s94, 0"); a("s_cbranch_scc1 EXIT")
    a("s_mov_b64 %s, s[84:85]" % sp(SRD_O)); a("s_mov_b32 s%d, 256" % (SRD_O + 2))
    a("s_lshl_b32 s94, s%d, 3" % sWAVE)
    a("v_mov_b32 v1, 0")
    a("s_mov_b64 exec, 1")
    a("s_not_b32 s95, s40")
    sel0 = [None, 0, 3, 4, 7, 9, 10, 11]
    sel4 = [1, 4, 5, 6, 8, 9, 10, 11]
    for i in range(8):
        a("s_cmp_eq_u32 s%d, 0" % sWAVE)
        a("s_cselect_b32 s96, %s, s%d" % ("s95" if sel0[i] is None else "s%d" % (40 + 2 * sel0[i]), 40 + 2 * sel4[i]))
        a("v_mov_b32 v4, s96")
        a("buffer_atomic_umax v4, v1, %s, s94 offen offset:%d sc1" % (srd(SRD_O), 4 * i))
        a("s_nop 1")
if int(opt["hold"]):
    if int(opt["holdx"]) >= 0:
        a("s_cmp_lg_u32 s%d, %d" % (sX8, int(opt["holdx"]))); a("s_cbranch_scc1 EXIT")
    a("s_add_u32 s40, s40, %d" % int(opt["hold"]))
    a("HOLD:")
    a("s_sleep 2")
    a("s_memrealtime s[42:43]"); a("s_waitcnt lgkmcnt(0)")
    a("s_sub_u32 s44, s42, s40"); a("s_cmp_lt_i32 s44, 0"); a("s_cbranch_scc1 HOLD")
a("EXIT:")
a("s_endpgm")
emit_retries()
a("V_REMOTE:")
a("s_add_u32 s95, s95, 0x%x" % (RB - RA)); a("s_add_u32 s96, s96, 0x%x" % (RB - RA))
a("s_mov_b64 exec, s[92:93]")
a("buffer_store_dwordx4 %s, v6, %s, s95 offen sc1" % (v4(STT), srd(SRD_WS)))
a("s_mov_b64 exec, -1")
a("s_nop 7")
o_epilogue()
a("buffer_store_dwordx4 %s, v7, %s, s96 offen sc1" % (v4(OO), srd(SRD_WS)))
a("s_branch V_PUB")
lines = hazard.fix(a.lines)
body = "\n".join(lines) + "\n"
body += ".fill 2600, 4, 0xbf810000\n"
open(sys.argv[1], "w").write(wrap(body, 256, 512, LDS_BYTES, vgpr=216))
```

```python
import sys, math, struct
from asmlib import *
import hazard
opt = dict(stamps="0", pol="nt", local="1", spin="20000", n1="6", b1wait="63", wfirst="0", warm="1", slp="1", rpol="sc1", rpipe="0", rslp="1", b2b="0", hold="0", holdx="-1", holdat="", ncopy="1", ackw="1", rstep="1", nv1="0", oslp="0")
for x in sys.argv[2:]:
    k, v = x.split("="); opt[k] = v
POL = {"nt": " nt", "none": "", "sc1nt": " sc1 nt"}[opt["pol"]]
RPOL = {"sc1": " sc1", "sys": " sc0 sc1"}[opt["rpol"]]
STAMPS = int(opt["stamps"]); SPIN = int(opt["spin"]); N1 = int(opt["n1"]); WFIRST = int(opt["wfirst"]); SLP = int(opt["slp"])

RSTEP = int(opt["rstep"])
QP, HP, RA, RB, STO, FP = 0x10000, 0x90000, 0x100000, 0x200000, 0x80000, 0x300000
LT0, LT1, LW, LW2, LQ, LS, LRED, LFLAG = 0, 14336, 28672, 45056, 53248, 54272, 55296, 59392
LDS_BYTES = 98304
sWAVE, sX8, sR, sB, sS, sTAG, sSPIN, sXCC, sTGX = 3, 28, 29, 30, 31, 32, 33, 34, 35
SRD_X, SRD_KV, SRD_T, SRD_W2, SRD_WS, SRD_O = 4, 8, 12, 16, 20, 24
pX, pK, pV, pWQ, pWO, pW1, pB1, pW2, pOUT, pWS = 64, 66, 68, 70, 72, 76, 78, 80, 82, 86
sM1, sM2, sM3 = 88, 90, 92
LOG2E = 1.4426950408889634
def f2u(f): return struct.unpack("<I", struct.pack("<f", f))[0]
def srd(n): return "s[%d:%d]" % (n, n + 3)
def sp(n): return "s[%d:%d]" % (n, n + 1)
def v4(n): return "v[%d:%d]" % (n, n + 3)
def v2(n): return "v[%d:%d]" % (n, n + 1)
DPPM = " row_mask:0xf bank_mask:0xf"
MF = "v_mfma_f32_16x16x32_bf16"

a = Asm()
ROLE = ["V"]
def stamp(i):
    if opt["holdat"] == "%s%d" % (ROLE[0], i):
        a("s_memrealtime s[40:41]"); a("s_waitcnt lgkmcnt(0)")
    if STAMPS and i < 12:
        a("s_memrealtime s[%d:%d]" % (40 + 2 * i, 41 + 2 * i)); a("s_waitcnt lgkmcnt(0)")
def rows_allreduce(op, xs, ts):
    for sw in ("v_permlane16_swap_b32", "v_permlane32_swap_b32"):
        for x, t in zip(xs, ts): a("v_mov_b32 v%d, v%d" % (t, x))
        for x, t in zip(xs, ts): a("%s v%d, v%d" % (sw, x, t))
        for x, t in zip(xs, ts): a("%s v%d, v%d, v%d" % (op, x, x, t))
def dpp_red(op, x, ctrl): a("%s_dpp v%d, v%d, v%d %s%s" % (op, x, x, x, ctrl, DPPM))
def bf16_round(x):
    a("v_cvt_pk_bf16_f32 v%d, v%d, v%d" % (x, x, x)); a("v_lshlrev_b32 v%d, 16, v%d" % (x, x))
def check_tags(eq, xo=()):
    for t in eq: a("v_cmpx_eq_u32 vcc, s%d, v%d" % (sTAG, t))
    for t in xo:
        a("v_xor_b32 v%d, s%d, v%d" % (t, sTAG, t)); a("v_cmpx_gt_u32 vcc, 16, v%d" % t)
    a("s_cmp_eq_u64 exec, -1")
    a("s_mov_b64 exec, -1")
RETRY = []
def poll_check(name, issue, eq, xo=(), sleep=None):
    a("%s_chk:" % name)
    check_tags(eq, xo)
    a("s_cbranch_scc0 %s_retry" % name)
    a("%s_ok:" % name)
    a("s_nop 2")
    RETRY.append((name, issue, sleep))
def emit_retries():
    for name, issue, sleep in RETRY:
        a("%s_retry:" % name)
        a("s_cmp_eq_u32 s%d, 0" % sSPIN)
        a("s_cbranch_scc1 %s_ok" % name)
        a("s_sub_u32 s%d, s%d, 1" % (sSPIN, sSPIN))
        if sleep: a("s_sleep %d" % sleep)
        issue()
        a("s_waitcnt vmcnt(0)")
        a("s_branch %s_chk" % name)
def make_tag():
    a("s_waitcnt lgkmcnt(0)")
    a("s_mul_i32 s%d, s%d, 1664525" % (sTAG, sTAG)); a("s_add_u32 s%d, s%d, 1013904223" % (sTAG, sTAG))
def tr_addrs():
    a("v_lshrrev_b32 v12, 2, v0"); a("v_lshlrev_b32 v12, 7, v12"); a("v_lshl_add_u32 v12, v5, 3, v12")
    a("v_and_b32 v13, 3, v11"); a("v_lshl_add_u32 v12, v13, 5, v12")
    for tp in range(1, 4): a("v_xor_b32 v%d, %d, v12" % (12 + tp, 32 * tp))

a("s_cmp_ge_u32 s2, 256")
a("s_cbranch_scc1 EXIT")
if STAMPS or int(opt["hold"]): a("s_memrealtime s[40:41]")
a("s_load_dwordx16 s[64:79], s[0:1], 0")
a("s_load_dwordx8 s[80:87], s[0:1], 64")
a("s_getpc_b64 s[36:37]")
a("v_mul_u32_u24 v1, 20, v0")
a("global_load_dword v215, v1, s[36:37]")
a("v_lshrrev_b32 v1, 6, v0")
a("v_and_b32 v0, 63, v0")
a("v_readfirstlane_b32 s%d, v1" % sWAVE)
a("s_and_b32 s%d, s2, 7" % sX8)
a("s_lshr_b32 s%d, s2, 3" % sR)
a("s_lshr_b32 s%d, s2, 6" % sB)
a("s_bfe_u32 s%d, s2, 0x30003" % sS)
a("s_getreg_b32 s%d, hwreg(HW_REG_XCC_ID, 0, 4)" % sXCC)
a("s_mov_b32 s%d, %d" % (sSPIN, SPIN))
for n, size in ((SRD_X, 3584), (SRD_KV, 1 << 26), (SRD_T, 448 * 8192), (SRD_W2, 1792 * 896), (SRD_WS, 1 << 28), (SRD_O, 3584)):
    a("s_mov_b32 s%d, 0x%x" % (n + 2, size)); a("s_mov_b32 s%d, 0x20000" % (n + 3))
a("s_lshl_b32 s36, s%d, 3" % sB); a("s_add_u32 s36, s36, s%d" % sX8); a("s_lshl_b32 s36, s36, 21")
a("s_lshl_b32 s38, s%d, 12" % sS); a("s_add_u32 s36, s36, %d" % (3072 * 512))
a("v_lshrrev_b32 v4, 4, v0"); a("v_and_b32 v5, 3, v0"); a("v_bfe_u32 v3, v0, 2, 2"); a("v_lshrrev_b32 v11, 3, v0")
a("v_lshlrev_b32 v10, 1, v4"); a("v_xor_b32 v10, v10, v0"); a("v_and_b32 v10, 7, v10"); a("v_lshlrev_b32 v10, 4, v10")
a("s_lshl_b32 s39, s%d, 5" % sX8); a("s_add_u32 s39, s39, s%d" % sR)
a("s_cmp_lg_u32 s%d, 0" % sWAVE)
a("s_cbranch_scc1 NOTW0")
XS, XF = 84, 100
a("s_setprio 3")
a("s_mul_i32 s98, s%d, %d" % (sB, 112 * 8192)); a("s_lshl_b32 s97, s%d, 10" % sX8); a("s_add_u32 s98, s98, s97")
a("s_lshl_b32 s97, s%d, 7" % sS); a("s_add_u32 s98, s98, s97")
a("s_mul_i32 s99, s%d, %d" % (sB, 112 * 3584)); a("s_mul_i32 s97, s%d, 448" % sX8); a("s_add_u32 s99, s99, s97")
a("s_lshl_b32 s97, s%d, 6" % sS); a("s_add_u32 s99, s99, s97")
a("s_cmp_eq_u32 s%d, 7" % sS); a("s_cselect_b32 s99, 0x40000000, s99")
a("v_mul_u32_u24 v6, 896, v3"); a("v_lshl_add_u32 v7, v4, 2, v5")
a("v_lshl_add_u32 v8, v4, 3, v6"); a("v_lshl_add_u32 v1, v7, 3, v6"); a("v_lshl_add_u32 v6, v7, 4, v6")
a("v_lshl_add_u32 v9, v11, 13, v10")
a("v_lshrrev_b32 v2, 2, v0"); a("v_mul_u32_u24 v2, 3584, v2"); a("v_and_b32 v7, 48, v10"); a("v_add_u32 v2, v2, v7")
a("s_mul_i32 s37, s%d, 224" % sB)
a("s_mov_b32 m0, %d" % LT0)
a("v_mov_b32 v16, 0"); a("v_mov_b32 v17, 0")
a("ds_write_b64 v16, v[16:17] offset:%d" % LFLAG); a("ds_write_b64 v16, v[16:17] offset:%d" % (LFLAG + 8))
a("s_waitcnt lgkmcnt(0)")
a("s_mov_b64 %s, %s" % (sp(SRD_T), sp(pWQ)))
a("s_mov_b64 %s, %s" % (sp(SRD_X), sp(pX)))
a("s_mov_b64 %s, %s" % (sp(SRD_W2), sp(pW1)))
for t in range(14):
    a("buffer_load_dwordx4 v9, %s, s98 offen%s lds" % (srd(SRD_T), POL))
    if t == 1:
        for i in range(3): a("buffer_load_dwordx4 %s, v6, %s, 0 offen offset:%d" % (v4(XS + 4 * i), srd(SRD_X), 256 * i))
        a("buffer_load_dwordx2 %s, v1, %s, 0 offen offset:768" % (v2(XS + 12), srd(SRD_X)))
        for m in range(7): a("buffer_load_dwordx2 %s, v8, %s, s37 offen offset:%d" % (v2(XF + 2 * m), srd(SRD_X), 32 * m))
    a("s_add_u32 m0, m0, 1024")
    if t < 13: a("s_add_u32 s98, s98, %d" % (8 * 8192))
for t in range(7):
    a("buffer_load_dwordx4 v2, %s, s99 offen%s lds" % (srd(SRD_W2), POL))
    if t < 6: a("s_add_u32 m0, m0, 1024"); a("s_add_u32 s99, s99, %d" % (16 * 3584))
a("s_load_dword s%d, %s, 0" % (sTAG, sp(pWS)))
a("s_mov_b64 %s, %s" % (sp(SRD_WS), sp(pWS)))
a("s_mov_b64 %s, %s" % (sp(SRD_KV), sp(pV)))
a("s_branch V_PROJ")

a("NOTW0:")
a("s_cmp_ge_u32 s%d, 4" % sWAVE)
a("s_waitcnt lgkmcnt(0)")
a("s_load_dword s%d, %s, 0" % (sTAG, sp(pWS)))
a("s_mov_b64 %s, %s" % (sp(SRD_WS), sp(pWS)))
a("s_cselect_b64 %s, %s, %s" % (sp(SRD_KV), sp(pK), sp(pV)))
a("s_cbranch_scc1 KWAVE")
if opt["warm"] == "1":
    a("s_lshl_b32 s94, s39, 11"); a("s_lshl_b32 s95, s%d, 10" % sWAVE); a("s_add_u32 s94, s94, s95"); a("s_add_u32 s94, s94, 0x%x" % (RA - 1024))
    a("s_lshl_b32 s95, s%d, 10" % sX8); a("s_add_u32 s95, s95, 0x%x" % (RA + STO))
    a("s_cmp_eq_u32 s%d, 3" % sWAVE); a("s_cselect_b32 s94, s95, s94")
    a("v_lshlrev_b32 v1, 4, v0")
a("s_barrier")
if opt["warm"] == "1":
    a("buffer_load_dwordx4 v[212:215], v1, %s, s94 offen sc1" % srd(SRD_WS))
make_tag()
a("s_branch V_B2")

a("KWAVE:")
ROLE[0] = "K"
KR = 16
a("s_sub_u32 s%d, s%d, 4" % (sWAVE, sWAVE))
a("s_setprio 2")
a("v_lshlrev_b32 v1, 9, v3"); a("v_lshl_add_u32 v1, v4, 6, v1"); a("v_lshl_add_u32 v1, v5, 4, v1")
a("s_lshr_b32 s37, s%d, 1" % sWAVE); a("s_lshl_b32 s93, s37, 14"); a("s_xor_b32 s38, s38, s93"); a("s_lshl_b32 s37, s37, 18"); a("s_add_u32 s36, s36, s37")
a("s_and_b32 s37, s%d, 1" % sWAVE); a("s_lshl_b32 s37, s37, 11"); a("s_add_u32 s36, s36, s37")
a("s_barrier")
def kload(i):
    if not i & 1: a("s_add_u32 s37, s36, s38")
    a("buffer_load_dwordx4 %s, v1, %s, s37 offen offset:%d%s" % (v4(KR + 4 * i), srd(SRD_KV), (i & 1) * 256, POL))
    if i & 1 and i < 15:
        a("s_add_u32 s36, s36, 32768"); a("s_add_u32 s38, s38, %d" % (4096 * RSTEP)); a("s_and_b32 s38, s38, 0x7000")
for i in range(N1): kload(i)
stamp(1)
a("s_branch K_MAIN")

a("V_PROJ:")
ROLE[0] = "V"
tr_addrs()
a("s_mov_b32 s37, 0x3f803f80")
a("v_mov_b32 v6, 0"); a("v_mov_b32 v7, 0")
WF, DT, PB = 116, 180, 196
for r in [XF + 14, XF + 15] + [WF + 16 * tp + k for tp in range(4) for k in (14, 15)]: a("v_mov_b32 v%d, 0" % r)
for nn, val in ((sM1, 0x22222222), (sM2, 0x44444444), (sM3, 0x88888888)):
    a("s_mov_b32 s%d, 0x%x" % (nn, val)); a("s_mov_b32 s%d, 0x%x" % (nn + 1, val))
a("v_lshlrev_b32 v2, 6, v4"); a("v_lshl_add_u32 v2, v5, 4, v2")
a("v_lshl_add_u32 v1, v3, 9, v2")
a("v_lshl_add_u32 v2, v3, 8, v2")
a("v_lshrrev_b32 v80, 2, v0"); a("v_lshlrev_b32 v80, 6, v80"); a("v_lshl_add_u32 v80, v5, 3, v80")
a("v_and_b32 v81, 1, v4"); a("v_lshl_add_u32 v80, v81, 5, v80"); a("v_xor_b32 v81, 32, v80")
a("s_lshl_b32 s98, s39, 11"); a("s_add_u32 s98, s98, 0x%x" % QP)
a("s_lshl_b32 s99, s39, 10"); a("s_add_u32 s99, s99, 0x%x" % HP)
if int(opt["b1wait"]) < 63: a("s_waitcnt vmcnt(%d)" % int(opt["b1wait"]))
a("s_barrier")
stamp(1)
a("s_waitcnt vmcnt(26)")
for i in range(14):
    a("v_dot2c_f32_bf16 v6, s37, v%d" % (XS + i)); a("v_dot2c_f32_bf16 v7, v%d, v%d" % (XS + i, XS + i))
for x in (6, 7): dpp_red("v_add_f32", x, "quad_perm:[1,0,3,2]")
for x in (6, 7): dpp_red("v_add_f32", x, "quad_perm:[2,3,0,1]")
rows_allreduce("v_add_f32", (6, 7), (8, 9))
a("v_mul_f32 v6, 0x%x, v6" % f2u(1.0 / 448)); a("v_mul_f32 v7, 0x%x, v7" % f2u(1.0 / 448))
a("v_fma_f32 v7, -v6, v6, v7"); a("v_max_f32 v7, 0, v7")
bf16_round(7); a("v_add_f32 v7, 0x%x, v7" % f2u(1e-5)); bf16_round(7)
a("v_sqrt_f32 v7, v7"); bf16_round(6); bf16_round(7); a("v_rcp_f32 v7, v7")
a("s_waitcnt vmcnt(19)")
a("v_mul_f32 v6, v6, v7")
for i in range(14):
    r = XF + i; t = XS + 2 * (i & 1)
    a("v_lshlrev_b32 v%d, 16, v%d" % (t, r)); a("v_and_b32 v%d, 0xffff0000, v%d" % (t + 1, r))
    a("v_fma_f32 v%d, v%d, v7, -v6" % (t, t)); a("v_fma_f32 v%d, v%d, v7, -v6" % (t + 1, t + 1))
    a("v_cvt_pk_bf16_f32 v%d, v%d, v%d" % (r, t, t + 1))
make_tag()
a("s_xor_b32 s%d, s%d, s%d" % (sTGX, sTAG, sXCC))
for i in (1, 5, 9): a("v_mov_b32 v%d, s%d" % (PB + i, sTAG))
for i in (3, 7, 11): a("v_mov_b32 v%d, s%d" % (PB + i, sTGX))
stamp(2)
a("s_waitcnt vmcnt(7)")
stamp(3)
def proj_mfma(q, d):
    for u in range(4): a("%s %s, %s, %s, %s" % (MF, v4(d), v4(WF + 16 * q + 4 * u), v4(XF + 4 * u), "0" if u == 0 else v4(d)))
for tp in range(4):
    for m in range(7): a("ds_read_b64_tr_b16 %s, v%d offset:%d" % (v2(WF + 16 * tp + 2 * m), 12 + tp, LT0 + 2048 * m))
    if tp >= 1:
        a("s_waitcnt lgkmcnt(7)"); proj_mfma(tp - 1, DT + 4 * (tp - 1))
a("s_waitcnt lgkmcnt(0)")
proj_mfma(3, DT + 12)
for r in range(4): a("v_cndmask_b32 v%d, v%d, v%d, %s" % (PB + 2 * r, DT + r, DT + 4 + r, sp(sM1)))
for r in range(4): a("v_cndmask_b32 v%d, v%d, v%d, %s" % (PB + 2 * r, PB + 2 * r, DT + 8 + r, sp(sM2)))
for r in range(4): a("v_cndmask_b32 v%d, v%d, v%d, %s" % (PB + 2 * r, PB + 2 * r, DT + 12 + r, sp(sM3)))
a("buffer_store_dwordx4 %s, v1, %s, s98 offen sc1" % (v4(PB), srd(SRD_WS)))
a("buffer_store_dwordx4 %s, v1, %s, s98 offen offset:256 sc1" % (v4(PB + 4), srd(SRD_WS)))
a("s_waitcnt vmcnt(2)")
for tp in range(2):
    for m in range(7): a("ds_read_b64_tr_b16 %s, v%d offset:%d" % (v2(WF + 16 * tp + 2 * m), 80 + tp, LT1 + 1024 * m))
a("s_waitcnt lgkmcnt(7)"); proj_mfma(0, DT)
a("s_waitcnt lgkmcnt(0)"); proj_mfma(1, DT + 4)
for k in range(2):
    a("v_cndmask_b32 v%d, v%d, v%d, %s" % (PB + 8 + 2 * k, DT + k, DT + 2 + k, sp(sM2)))
for k in range(2):
    a("v_cndmask_b32 v%d, v%d, v%d, %s" % (PB + 8 + 2 * k, PB + 8 + 2 * k, DT + 4 + k, sp(sM1)))
for k in range(2):
    a("v_cndmask_b32 v%d, v%d, v%d, %s" % (PB + 8 + 2 * k, PB + 8 + 2 * k, DT + 6 + k, sp(sM3)))
a("buffer_store_dwordx4 %s, v2, %s, s99 offen sc1" % (v4(PB + 8), srd(SRD_WS)))
a("s_setprio 0")
a("V_B2:")
stamp(4)
a("s_barrier")
VR, VF, DV = 16, 80, 144
a("v_lshlrev_b32 v1, 9, v11"); a("v_and_b32 v6, 7, v0"); a("v_lshl_add_u32 v1, v6, 4, v1")
a("s_lshl_b32 s37, s%d, 7" % sWAVE); a("s_add_u32 s36, s36, s37")
a("s_mov_b32 s98, 0x05040100"); a("s_mov_b32 s99, 0x07060302")
a("v_bfe_u32 v6, v0, 2, 1"); a("v_lshlrev_b32 v8, 9, v6"); a("v_lshl_add_u32 v8, v4, 6, v8")
a("v_and_b32 v7, 1, v0"); a("v_lshl_add_u32 v8, v7, 5, v8"); a("v_lshlrev_b32 v6, 9, v6")
SS, PFR, STT, TT, OO = 176, 192, 200, 204, 208
a("s_lshl_b32 s95, s%d, 10" % sX8); a("s_lshl_b32 s96, s%d, 4" % sR); a("s_add_u32 s95, s95, s96"); a("s_add_u32 s95, s95, 0x%x" % (RA + STO))
a("s_lshl_b32 s96, s%d, 16" % sX8); a("s_lshl_b32 s97, s%d, 13" % sWAVE); a("s_add_u32 s96, s96, s97")
a("s_lshr_b32 s97, s%d, 2" % sS); a("s_lshl_b32 s97, s97, 11"); a("s_add_u32 s96, s96, s97")
a("s_lshl_b32 s97, s%d, 6" % sB); a("s_add_u32 s96, s96, s97"); a("s_and_b32 s97, s%d, 3" % sS); a("s_lshl_b32 s97, s97, 4"); a("s_add_u32 s96, s96, s97")
a("s_add_u32 s96, s96, 0x%x" % RA)
a("v_bfe_u32 v9, v0, 4, 1"); a("v_lshlrev_b32 v9, 15, v9"); a("v_lshl_add_u32 v9, v7, 9, v9")
a("v_bfe_u32 v7, v0, 2, 1"); a("v_lshl_add_u32 v9, v7, 12, v9"); a("v_bfe_u32 v7, v0, 1, 1"); a("v_lshl_add_u32 v9, v7, 10, v9")
a("v_bfe_u32 v7, v0, 3, 1"); a("v_lshl_add_u32 v7, v7, 8, v9")
a("v_mov_b32 v2, 0")
a("s_mov_b32 s100, 0x%x" % f2u(LOG2E / 16))
if opt["b2b"] == "1": a("s_barrier")
stamp(5)
for i in range(16):
    if int(opt["nv1"]) and i == int(opt["nv1"]): a("s_barrier")
    a("s_add_u32 s37, s36, s38")
    a("buffer_load_dwordx4 %s, v1, %s, s37 offen%s" % (v4(VR + 4 * i), srd(SRD_KV), POL))
    if i < 15:
        a("s_add_u32 s36, s36, 32768"); a("s_add_u32 s38, s38, %d" % (4096 * (RSTEP + (4 if i == 7 else 0)))); a("s_and_b32 s38, s38, 0x7000")
for r in (STT + 1, STT + 3, OO + 1, OO + 3): a("v_mov_b32 v%d, s%d" % (r, sTAG))
a("s_bitcmp1_b32 s%d, 0" % sWAVE); a("s_cselect_b32 s92, 16, 1"); a("s_mov_b32 s93, 0")
stamp(6)
a("s_barrier")
stamp(7)
def vperm(pair):
    G, i = pair >> 2, pair & 3
    for m in range(4):
        A = VR + 4 * (2 * pair) + m; B = A + 4
        a("v_perm_b32 v%d, v%d, v%d, s98" % (VF + 32 * G + 4 * (2 * m) + i, B, A))
        a("v_perm_b32 v%d, v%d, v%d, s99" % (VF + 32 * G + 4 * (2 * m + 1) + i, B, A))
for k, off in enumerate((0, 16, 256, 272)): a("ds_read_b128 %s, v8 offset:%d" % (v4(SS + 4 * k), LS + off))
a("ds_read_b128 %s, v2 offset:%d" % (v4(TT), LFLAG))
a("s_waitcnt lgkmcnt(0)")
a("v_min3_u32 v2, v%d, v%d, v%d" % (TT, TT + 1, TT + 2)); a("v_min_u32 v2, v2, v%d" % (TT + 3))
a("v_readfirstlane_b32 s101, v2")
a("v_max3_f32 v8, v%d, v%d, v%d" % (SS, SS + 1, SS + 2)); a("v_max3_f32 v9, v%d, v%d, v%d" % (SS + 3, SS + 4, SS + 5))
a("v_max3_f32 v8, v8, v%d, v%d" % (SS + 6, SS + 7)); a("v_max3_f32 v9, v9, v%d, v%d" % (SS + 8, SS + 9))
a("v_max3_f32 v8, v8, v%d, v%d" % (SS + 10, SS + 11)); a("v_max3_f32 v9, v9, v%d, v%d" % (SS + 12, SS + 13))
a("v_max3_f32 v8, v8, v%d, v%d" % (SS + 14, SS + 15)); a("v_max_f32 v8, v8, v9")
dpp_red("v_max_f32", 8, "quad_perm:[1,0,3,2]")
rows_allreduce("v_max_f32", (8,), (9,))
a("v_mul_f32 v%d, s100, v8" % STT)
for k in range(16): a("v_fma_f32 v%d, v%d, s100, -v%d" % (SS + k, SS + k, STT))
for k in range(16): a("v_exp_f32 v%d, v%d" % (SS + k, SS + k))
for k in range(8): a("v_cvt_pk_bf16_f32 v%d, v%d, v%d" % (PFR + k, SS + 2 * k, SS + 2 * k + 1))
for k in range(8): a("v_add_f32 v%d, v%d, v%d" % (SS + k, SS + k, SS + 8 + k))
for k in range(4): a("v_add_f32 v%d, v%d, v%d" % (SS + k, SS + k, SS + 4 + k))
a("v_add_f32 v%d, v%d, v%d" % (SS, SS, SS + 2)); a("v_add_f32 v%d, v%d, v%d" % (SS + 1, SS + 1, SS + 3))
a("v_add_f32 v%d, v%d, v%d" % (STT + 2, SS, SS + 1))
dpp_red("v_add_f32", STT + 2, "quad_perm:[1,0,3,2]")
rows_allreduce("v_add_f32", (STT + 2,), (9,))
def pv_mfma(G):
    for j in range(8): a("%s %s, %s, %s, %s" % (MF, v4(DV + 4 * j), v4(PFR + 4 * G), v4(VF + 32 * G + 4 * j), "0" if G == 0 else v4(DV + 4 * j)))
for p in range(8):
    a("s_waitcnt vmcnt(%d)" % (16 - 2 * (p + 1))); vperm(p)
    if p == 3: pv_mfma(0)
stamp(8)
pv_mfma(1)
a("s_cmp_eq_u32 s101, %d" % (2 if opt["local"] == "1" else 3))
a("s_cbranch_scc0 V_REMOTE")
a("s_mov_b64 exec, s[92:93]")
a("buffer_store_dwordx4 %s, v6, %s, s95 offen" % (v4(STT), srd(SRD_WS)))
a("s_mov_b64 exec, -1")
def o_epilogue():
    for j in range(4): a("v_add_f32_dpp v%d, v%d, v%d row_ror:8 row_mask:0xf bank_mask:0x3" % (TT + j, DV + 4 * j + 1, DV + 4 * j))
    for j in range(4, 8): a("v_add_f32_dpp v%d, v%d, v%d row_ror:8 row_mask:0xf bank_mask:0xc" % (TT + j - 4, DV + 4 * j, DV + 4 * j + 1))
    a("v_cvt_pk_bf16_f32 v%d, v%d, v%d" % (OO, TT, TT + 1)); a("v_cvt_pk_bf16_f32 v%d, v%d, v%d" % (OO + 2, TT + 2, TT + 3))
    a("s_mov_b32 exec_hi, 0")
o_epilogue()
a("buffer_store_dwordx4 %s, v7, %s, s96 offen" % (v4(OO), srd(SRD_WS)))
a("V_PUB:")
a("s_mov_b64 exec, -1")
stamp(9)
a("s_cmp_ge_u32 s%d, 28" % sR)
a("s_cbranch_scc1 FINISH")
a("s_barrier")
a("s_barrier")
a("s_branch FINISH")

a("K_MAIN:")
ROLE[0] = "K"
a("s_and_b32 s88, s%d, 3" % sR); a("s_lshr_b32 s89, s%d, 2" % sR)
a("s_mov_b64 %s, %s" % (sp(SRD_T), sp(pWO))); a("s_mov_b64 %s, %s" % (sp(SRD_W2), sp(pW2))); a("s_mov_b64 %s, %s" % (sp(SRD_O), sp(pB1)))
a("s_mov_b64 %s, %s" % (sp(SRD_X), sp(pX)))
a("s_lshl_b32 s92, s%d, 12" % sWAVE)
a("s_lshl_b32 s90, s%d, 2" % sWAVE); a("s_add_u32 s90, s90, s88")
a("s_mul_i32 s91, s%d, 7" % sX8); a("s_add_u32 s91, s91, s90")
a("s_cmp_ge_u32 s%d, 28" % sR); a("s_cselect_b32 s90, 7, s90")
a("s_lshl_b32 s64, s%d, 4" % sX8); a("s_lshl_b32 s97, s88, 2"); a("s_add_u32 s64, s64, s97"); a("s_add_u32 s64, s64, s%d" % sWAVE)
a("s_mul_i32 s64, s64, %d" % (32 * 896)); a("s_lshl_b32 s97, s89, 7"); a("s_add_u32 s64, s64, s97")
a("s_mul_i32 s65, s91, %d" % (32 * 896)); a("s_add_u32 s65, s65, s97")
a("s_lshl_b32 s94, s%d, 16" % sX8); a("s_add_u32 s94, s94, s92")
a("s_lshl_b32 s95, s%d, 9" % sB); a("s_add_u32 s94, s94, s95"); a("s_add_u32 s94, s94, 0x%x" % QP)
for k in range(1, 4): a("s_add_u32 s%d, s94, %d" % (94 + k, 16384 * k))
a("s_lshl_b32 s66, s%d, 5" % sX8); a("s_add_u32 s66, s66, s90"); a("s_lshl_b32 s66, s66, 10"); a("s_add_u32 s66, s66, 0x%x" % HP)
a("s_lshl_b32 s67, s91, 6")
a("s_lshl_b32 s68, s%d, 1" % sX8); a("s_lshr_b32 s99, s88, 1"); a("s_add_u32 s68, s68, s99"); a("s_lshl_b32 s68, s68, 9"); a("s_add_u32 s68, s68, 0x%x" % (RA + STO))
a("s_lshl_b32 s69, s%d, 16" % sX8); a("s_lshl_b32 s99, s88, 14"); a("s_add_u32 s69, s69, s99"); a("s_add_u32 s69, s69, s92"); a("s_add_u32 s69, s69, 0x%x" % RA)
for k in range(1, 4): a("s_add_u32 s%d, s66, %d" % (72 + k, 8192 * k))
a("s_lshl_b32 s71, s89, 5"); a("s_lshl_b32 s99, s%d, 2" % sX8); a("s_add_u32 s71, s71, s99"); a("s_add_u32 s71, s71, s88")
a("s_and_b32 s100, s%d, 1" % sWAVE)
a("s_lshl_b32 s71, s71, 1"); a("s_add_u32 s71, s71, s100"); a("s_lshl_b32 s71, s71, 10"); a("s_add_u32 s71, s71, 0x%x" % FP)
a("s_and_b32 s76, s%d, 3" % sX8); a("s_mul_i32 s76, s76, 896"); a("s_lshl_b32 s99, s89, 7"); a("s_add_u32 s76, s76, s99")
a("s_lshr_b32 s99, s%d, 2" % sX8); a("s_lshl_b32 s99, s99, 6"); a("s_add_u32 s76, s76, s99"); a("s_lshl_b32 s99, s88, 3"); a("s_add_u32 s76, s76, s99")
a("s_lshl_b32 s77, s%d, 2" % sX8); a("s_add_u32 s77, s77, s88"); a("s_lshl_b32 s77, s77, 6"); a("s_lshl_b32 s99, s89, 16"); a("s_add_u32 s77, s77, s99"); a("s_add_u32 s77, s77, 0x%x" % FP)
a("v_lshlrev_b32 v204, 1, v5")
a("v_lshrrev_b32 v205, 2, v0"); a("v_lshlrev_b32 v205, 11, v205"); a("v_lshl_add_u32 v205, v5, 4, v205")
tr_addrs()
for tp in range(4): a("v_add_u32 v%d, s92, v%d" % (12 + tp, 12 + tp))
vWD, vQG, vQW, vQR, vSW, vBI, vHG, vST, vOG, vRW, vRR, vL16, vFL, vZ = 184, 185, 186, 187, 188, 189, 190, 191, 192, 193, 194, 195, 196, 197
a("v_mul_u32_u24 v%d, 896, v11" % vWD); a("v_add_u32 v%d, v%d, v10" % (vWD, vWD))
a("v_lshrrev_b32 v7, 5, v0"); a("v_bfe_u32 v9, v0, 4, 1")
a("v_lshlrev_b32 v6, 11, v7"); a("v_and_b32 v8, 31, v0"); a("v_lshl_add_u32 v%d, v8, 4, v6" % vQG)
a("v_lshlrev_b32 v6, 7, v7"); a("v_lshl_add_u32 v6, v5, 5, v6"); a("v_lshl_add_u32 v6, v3, 3, v6"); a("v_lshl_add_u32 v6, v9, 2, v6")
a("s_lshl_b32 s98, s%d, 8" % sWAVE); a("v_add_u32 v%d, s98, v6" % vQW)
a("v_bfe_u32 v6, v0, 2, 1"); a("v_lshlrev_b32 v6, 9, v6"); a("v_lshl_add_u32 v6, v4, 6, v6"); a("v_lshl_add_u32 v%d, v5, 4, v6" % vQR)
a("v_lshlrev_b32 v6, 9, v9"); a("v_lshl_add_u32 v6, v3, 5, v6"); a("s_lshl_b32 s98, s%d, 7" % sWAVE)
a("v_add_u32 v%d, s98, v6" % vSW)
a("v_and_b32 v6, 1, v0"); a("v_lshlrev_b32 v6, 5, v6"); a("v_lshl_add_u32 v6, v4, 3, v6"); a("v_bfe_u32 v8, v0, 1, 1"); a("v_lshl_add_u32 v%d, v8, 2, v6" % vBI)
a("v_lshlrev_b32 v6, 4, v5"); a("v_lshl_add_u32 v6, v3, 8, v6"); a("v_lshl_add_u32 v%d, v4, 6, v6" % vHG)
a("v_and_b32 v6, 7, v0"); a("v_lshl_add_u32 v6, v4, 3, v6"); a("v_lshlrev_b32 v%d, 4, v6" % vST)
a("v_lshlrev_b32 v%d, 4, v0" % vL16)
a("s_lshl_b32 s98, s%d, 10" % sWAVE); a("v_add_u32 v%d, s98, v%d" % (vRW, vL16))
a("s_lshl_b32 s98, s100, 3"); a("v_add_u32 v%d, s98, v%d" % (vRR, vL16))
a("s_lshl_b32 s98, s%d, 2" % sWAVE); a("v_mov_b32 v%d, s98" % vFL); a("v_mov_b32 v%d, 0" % vZ)
ACC, PO = 156, 160
for i in range(4): a("v_mov_b32 v%d, 0" % (ACC + i))
make_tag()
a("v_mov_b32 v%d, s%d" % (PO + 1, sTAG)); a("v_mov_b32 v%d, s%d" % (PO + 3, sTAG))
QG, HB, HG, SG, OG = 84, 164, 168, 200, 100
def issue_q():
    for k in range(4): a("buffer_load_dwordx4 %s, v%d, %s, s%d offen sc1" % (v4(QG + 4 * k), vQG, srd(SRD_WS), 94 + k))
def issue_h():
    for k, so in enumerate((66, 73, 74, 75)): a("buffer_load_dwordx4 %s, v%d, %s, s%d offen sc1" % (v4(HG + 4 * k), vHG, srd(SRD_WS), so))
def issue_o():
    for hf in range(2):
        for z in range(2): a("buffer_load_dwordx4 %s, v%d, %s, s69 offen offset:%d sc1" % (v4(OG + 8 * hf + 4 * z), vL16, srd(SRD_WS), 2048 * hf + 1024 * z))
    a("buffer_load_dwordx4 %s, v%d, %s, s68 offen sc1" % (v4(SG), vST, srd(SRD_WS)))
def wdma(s, so):
    for t in range(4):
        a("buffer_load_dwordx4 v%d, %s, s%d offen%s lds" % (vWD, srd(s), so, POL))
        if t < 3: a("s_add_u32 m0, m0, 1024"); a("s_add_u32 s%d, s%d, %d" % (so, so, 8 * 896))
def issue_w(lbl):
    a("s_add_u32 m0, s92, %d" % LW)
    wdma(SRD_T, 64)
    a("s_cmp_ge_u32 s90, 7"); a("s_cbranch_scc1 %s" % lbl)
    a("s_add_u32 m0, s92, %d" % LW2)
    wdma(SRD_W2, 65)
    a("%s:" % lbl)
stamp(2)
a("s_barrier")
for i in range(N1, 16): kload(i)
if int(opt["nv1"]): a("s_barrier")
a("s_cmp_ge_u32 s%d, 28" % sR); a("s_cbranch_scc1 K_NOH")
if WFIRST: issue_w("K_W1")
a("buffer_load_ushort v206, v204, %s, s76 offen" % srd(SRD_X)); a("buffer_load_ushort v207, v204, %s, s76 offen offset:32" % srd(SRD_X))
a("s_cmp_ge_u32 s90, 7"); a("s_cbranch_scc1 K_NOH")
a("buffer_load_dword v%d, v%d, %s, s67 offen" % (HB, vBI, srd(SRD_O)))
issue_h()
a("K_NOH:")
issue_q()
stamp(3)
if opt["b2b"] == "1": a("s_barrier")
a("s_waitcnt vmcnt(0)")
poll_check("PQ", issue_q, [QG + 4 * k + 1 for k in range(4)], [QG + 4 * k + 3 for k in range(4)], sleep=SLP)
stamp(4)
a("v_add_f32 v%d, v%d, v%d" % (QG, QG, QG + 4)); a("v_add_f32 v%d, v%d, v%d" % (QG + 2, QG + 2, QG + 6))
a("v_add_f32 v%d, v%d, v%d" % (QG + 8, QG + 8, QG + 12)); a("v_add_f32 v%d, v%d, v%d" % (QG + 10, QG + 10, QG + 14))
a("v_add_f32 v%d, v%d, v%d" % (QG, QG, QG + 8)); a("v_add_f32 v%d, v%d, v%d" % (QG + 2, QG + 2, QG + 10))
a("v_cvt_pk_bf16_f32 v%d, v%d, v%d" % (QG, QG, QG + 2))
a("ds_write_b32 v%d, v%d offset:%d" % (vQW, QG, LQ))
for k in range(4): a("v_cmpx_eq_u32 vcc, s%d, v%d" % (sXCC, QG + 4 * k + 3))
a("s_cmp_eq_u64 exec, -1"); a("s_mov_b64 exec, -1"); a("s_cselect_b32 s98, 2, 1")
a("v_mov_b32 v82, s98")
a("s_waitcnt lgkmcnt(0)")
a("ds_write_b32 v%d, v82 offset:%d" % (vFL, LFLAG))
a("s_mov_b32 s99, %d" % (SPIN * 16))
a("PF:")
a("ds_read_b128 %s, v%d offset:%d" % (v4(QG + 4), vZ, LFLAG))
a("s_waitcnt lgkmcnt(0)")
a("v_min3_u32 v82, v%d, v%d, v%d" % (QG + 4, QG + 5, QG + 6)); a("v_min_u32 v82, v82, v%d" % (QG + 7))
a("v_readfirstlane_b32 s101, v82")
a("s_cmp_lg_u32 s101, 0")
a("s_cbranch_scc1 PF_ok")
a("s_sub_u32 s99, s99, 1")
a("s_cbranch_scc0 PF")
a("PF_ok:")
QF = 92
a("ds_read_b128 %s, v%d offset:%d" % (v4(QF), vQR, LQ)); a("ds_read_b128 %s, v%d offset:%d" % (v4(QF + 4), vQR, LQ + 256))
DQ, SC = 116, 148
a("s_waitcnt lgkmcnt(0)")
for t in range(8): a("%s %s, %s, %s, 0" % (MF, v4(DQ + 4 * t), v4(QF), v4(KR + 8 * t)))
for t in range(8): a("%s %s, %s, %s, %s" % (MF, v4(DQ + 4 * t), v4(QF + 4), v4(KR + 8 * t + 4), v4(DQ + 4 * t)))
for r in range(4):
    for t in range(8):
        qp = "quad_perm:[%d,%d,%d,%d]" % (r, r, r, r)
        if r == 0: a("v_mov_b32_dpp v%d, v%d %s%s" % (SC + t, DQ + 4 * t, qp, DPPM))
        else: a("v_add_f32_dpp v%d, v%d, v%d %s%s" % (SC + t, DQ + 4 * t + r, SC + t, qp, DPPM))
a("ds_write_b128 v%d, %s offset:%d" % (vSW, v4(SC), LS)); a("ds_write_b128 v%d, %s offset:%d" % (vSW, v4(SC + 4), LS + 16))
a("s_cmp_eq_u32 s101, %d" % (2 if opt["local"] == "1" else 3)); a("s_cselect_b32 s98, 0, 0x%x" % (RB - RA))
for r in (68, 69): a("s_add_u32 s%d, s%d, s98" % (r, r))
a("s_waitcnt lgkmcnt(0)")
stamp(5)
a("s_barrier")
stamp(6)
a("s_cmp_ge_u32 s%d, 28" % sR)
a("s_cbranch_scc1 KFINISH")
if not WFIRST: issue_w("K_W2")
a("s_cmp_ge_u32 s90, 7")
a("s_cbranch_scc1 NOMLP1")
poll_check("PH", issue_h, [HG + 4 * k + 1 for k in range(4)], [HG + 4 * k + 3 for k in range(4)], sleep=SLP)
hv = [HG, HG + 2]
for x in hv:
    a("v_add_f32 v%d, v%d, v%d" % (x, x, x + 4)); a("v_add_f32 v%d, v%d, v%d" % (x + 8, x + 8, x + 12))
a("v_lshlrev_b32 v%d, 16, v%d" % (HG + 1, HB)); a("v_and_b32 v%d, 0xffff0000, v%d" % (HG + 3, HB))
for x in hv: a("v_add_f32 v%d, v%d, v%d" % (x, x, x + 8))
for x in hv: a("v_add_f32 v%d, v%d, v%d" % (x, x, x + 1))
a("s_mov_b32 s96, 0x%x" % f2u(-LOG2E))
T1, T2 = 16, 24
for k, x in enumerate(hv): a("v_mul_f32 v%d, s96, |v%d|" % (x + 1, x))
for k, x in enumerate(hv): a("v_exp_f32 v%d, v%d" % (x + 1, x + 1))
for k, x in enumerate(hv):
    a("v_cmp_lt_f32 vcc, 0, v%d" % x)
    a("v_mul_f32 v%d, v%d, v%d" % (T1 + k, x + 1, x + 1))
    a("v_cndmask_b32 v%d, 1.0, v%d, vcc" % (T2 + k, T1 + k))
    a("v_cndmask_b32_e64 v%d, v%d, 1.0, vcc" % (T1 + k, T1 + k))
    a("v_fma_f32 v%d, v%d, 2.0, v%d" % (T1 + k, x + 1, T1 + k))
    a("v_fma_f32 v%d, v%d, 2.0, v%d" % (T2 + k, T2 + k, T1 + k))
for k, x in enumerate(hv): a("v_rcp_f32 v%d, v%d" % (T2 + k, T2 + k))
for k, x in enumerate(hv): a("v_mul_f32 v%d, v%d, v%d" % (x, x, T1 + k))
for k, x in enumerate(hv): a("v_mul_f32 v%d, v%d, v%d" % (x, x, T2 + k))
AF = 80
a("v_cvt_pk_bf16_f32 v%d, v%d, v%d" % (HG, HG, HG + 2))
for k, src in enumerate((0, 2, 1, 3)): a("v_mov_b32_dpp v%d, v%d quad_perm:[%d,%d,%d,%d]%s" % (AF + k, HG, src, src, src, src, DPPM))
a("NOMLP1:")
WOF, W2F, DM, DO = 116, 132, 48, 16
def wfrags(lbl):
    for tp in range(4):
        for m in range(2): a("ds_read_b64_tr_b16 %s, v%d offset:%d" % (v2(WOF + 4 * tp + 2 * m), 12 + tp, LW + 2048 * m))
    a("s_cmp_ge_u32 s90, 7"); a("s_cbranch_scc1 %s" % lbl)
    for tp in range(4):
        for m in range(2): a("ds_read_b64_tr_b16 %s, v%d offset:%d" % (v2(W2F + 4 * tp + 2 * m), 12 + tp, LW2 + 2048 * m))
    a("s_waitcnt lgkmcnt(0)")
    for tp in range(4): a("%s %s, %s, %s, 0" % (MF, v4(DM + 4 * tp), v4(AF), v4(W2F + 4 * tp)))
    for tp in range(4): a("v_mov_b32 v%d, v%d" % (ACC + tp, DM + 4 * tp))
    a("%s:" % lbl)
if WFIRST: wfrags("NOMLP2")
stamp(7)
a("s_barrier")
stamp(8)
issue_o()
if not WFIRST:
    a("s_waitcnt vmcnt(5)")
    wfrags("NOMLP2")
a("s_waitcnt vmcnt(0)")
poll_check("PO", issue_o, [OG + 4 * k + j for k in range(4) for j in (1, 3)] + [SG + 1, SG + 3], sleep=int(opt["oslp"]))
stamp(9)
for hf in range(2):
    o = OG + 8 * hf
    a("v_mov_b32 v%d, v%d" % (o + 1, o + 2)); a("v_mov_b32 v%d, v%d" % (o + 2, o + 4)); a("v_mov_b32 v%d, v%d" % (o + 3, o + 6))
a("v_mov_b32 v%d, v%d" % (SG + 1, SG))
a("s_waitcnt lgkmcnt(0)")
fops = [lambda: dpp_red("v_max_f32", SG + 1, "quad_perm:[1,0,3,2]"), lambda: dpp_red("v_max_f32", SG + 1, "quad_perm:[2,3,0,1]"),
        lambda: dpp_red("v_max_f32", SG + 1, "row_half_mirror"),
        lambda: (a("v_sub_f32 v%d, v%d, v%d" % (SG, SG, SG + 1)), a("v_exp_f32 v%d, v%d" % (SG, SG))),
        lambda: a("v_mul_f32 v%d, v%d, v%d" % (SG + 2, SG + 2, SG)),
        lambda: dpp_red("v_add_f32", SG + 2, "quad_perm:[1,0,3,2]"), lambda: dpp_red("v_add_f32", SG + 2, "quad_perm:[2,3,0,1]"),
        lambda: dpp_red("v_add_f32", SG + 2, "row_half_mirror")]
k = 0
for hf in range(2):
    for tp in range(4):
        a("%s %s, %s, %s, 0" % (MF, v4(DO + 16 * hf + 4 * tp), v4(OG + 8 * hf), v4(WOF + 4 * tp)))
        fops[k](); k += 1
a("v_rcp_f32 v%d, v%d" % (SG + 2, SG + 2)); a("v_mul_f32 v%d, v%d, v%d" % (SG, SG, SG + 2))
for hf in range(2):
    for r in range(4):
        for tp in range(4):
            a("v_fmac_f32_dpp v%d, v%d, v%d row_newbcast:%d%s" % (ACC + tp, SG, DO + 16 * hf + 4 * tp + r, 4 * hf + r, DPPM))
a("ds_write_b128 v%d, %s offset:%d" % (vRW, v4(ACC), LRED))
a("s_waitcnt lgkmcnt(0)")
a("s_barrier")
for u in range(4): a("ds_read_b64 %s, v%d offset:%d" % (v2(16 + 2 * u), vRR, LRED + 1024 * u))
a("s_waitcnt lgkmcnt(0)")
a("v_add_f32 v16, v16, v18"); a("v_add_f32 v17, v17, v19"); a("v_add_f32 v20, v20, v22"); a("v_add_f32 v21, v21, v23")
a("v_add_f32 v%d, v16, v20" % PO); a("v_add_f32 v%d, v17, v21" % (PO + 2))
NC = int(opt["ncopy"]); CST = 0x80000
a("s_cmp_ge_u32 s%d, 2" % sWAVE)
a("s_cbranch_scc1 K_LASTC")
for c in range(NC - 1):
    a("buffer_store_dwordx4 %s, v%d, %s, s71 offen%s" % (v4(PO), vL16, srd(SRD_WS), RPOL))
    if c < NC - 2: a("s_add_u32 s71, s71, 0x%x" % CST)
stamp(10)
a("s_branch KFINISH")
a("K_LASTC:")
a("s_add_u32 s71, s71, 0x%x" % ((NC - 1) * CST))
a("buffer_store_dwordx4 %s, v%d, %s, s71 offen%s" % (v4(PO), vL16, srd(SRD_WS), RPOL))
stamp(10)
a("s_cmp_lg_u32 s%d, 2" % sWAVE)
a("s_cbranch_scc1 KFINISH")
a("s_mov_b64 %s, %s" % (sp(SRD_O), sp(pOUT)))
a("v_lshlrev_b32 v206, 16, v206"); a("v_lshlrev_b32 v207, 16, v207")
a("s_mov_b64 s[94:95], -1"); a("s_mov_b64 s[96:97], -1")
a("s_add_u32 s78, s77, 32768")
a("s_add_u32 s79, s77, 0x%x" % ((NC - 1) * CST))
if opt["ackw"] == "1": a("s_waitcnt vmcnt(0)")
a("PR:")
for y in range(2):
    a("s_mov_b64 exec, s[%d:%d]" % (94 + 2 * y, 95 + 2 * y))
    a("s_cbranch_execz PR_s%d" % y)
    a("buffer_load_dwordx4 %s, v205, %s, s%d offen%s" % (v4(20 + 4 * y), srd(SRD_WS), 77 + y, RPOL))
    a("PR_s%d:" % y)
a("s_mov_b64 exec, -1")
a("s_cmp_lt_u32 s77, s79"); a("s_cselect_b32 s98, 0x%x, 0" % CST); a("s_add_u32 s77, s77, s98"); a("s_add_u32 s78, s78, s98")
a("s_waitcnt vmcnt(0)")
for y in range(2):
    a("v_cmp_ne_u32 vcc, s%d, v%d" % (sTAG, 21 + 4 * y)); a("v_cmp_ne_u32 s[%d:%d], s%d, v%d" % (94 + 2 * y, 95 + 2 * y, sTAG, 23 + 4 * y))
    a("s_or_b64 s[%d:%d], s[%d:%d], vcc" % (94 + 2 * y, 95 + 2 * y, 94 + 2 * y, 95 + 2 * y))
a("v_add_f32 v18, v20, v24"); a("v_add_f32 v19, v22, v26")
a("s_or_b64 vcc, s[94:95], s[96:97]")
a("s_cbranch_scc0 PR_ok")
a("s_cmp_eq_u32 s%d, 0" % sSPIN); a("s_cbranch_scc1 PR_ok"); a("s_sub_u32 s%d, s%d, 1" % (sSPIN, sSPIN))
a("s_branch PR")
a("PR_ok:")
ROLE[0] = "R"
if STAMPS: a("s_memrealtime s[42:43]"); a("s_waitcnt lgkmcnt(0)")
stamp(12)
for x in (18, 19): dpp_red("v_add_f32", x, "row_ror:4")
for x in (18, 19): dpp_red("v_add_f32", x, "row_ror:8")
rows_allreduce("v_add_f32", (18, 19), (8, 9))
a("v_add_f32 v18, v18, v206"); a("v_add_f32 v19, v19, v207")
a("v_cvt_pk_bf16_f32 v18, v18, v19")
a("s_mov_b64 exec, 0xf")
a("buffer_store_short v18, v204, %s, s76 offen" % srd(SRD_O))
a("buffer_store_short_d16_hi v18, v204, %s, s76 offen offset:32" % srd(SRD_O))
a("s_mov_b64 exec, -1")
a("s_cmp_lg_u32 s2, 0")
a("s_cbranch_scc1 KFINISH")
a("v_mov_b32 v8, s%d" % sTAG)
a("s_mov_b64 exec, 1")
a("buffer_store_dword v8, v%d, %s, 0 offen sc1" % (vZ, srd(SRD_WS)))
a("s_mov_b64 exec, -1")
a("KFINISH:")
if STAMPS: a("s_add_u32 s%d, s%d, 4" % (sWAVE, sWAVE))
a("FINISH:")
if STAMPS == 1:
    a("s_waitcnt vmcnt(0)")
    stamp(11)
    a("s_lshl_b32 s94, s2, 3"); a("s_add_u32 s94, s94, s%d" % sWAVE); a("s_lshl_b32 s94, s94, 7"); a("s_add_u32 s94, s94, 0x%x" % STAMP_OFF)
    a("v_mov_b32 v1, 0")
    a("s_mov_b64 exec, 1")
    for i in range(12):
        a("v_mov_b32 v4, s%d" % (40 + 2 * i)); a("v_mov_b32 v5, s%d" % (41 + 2 * i))
        a("buffer_store_dwordx2 v[4:5], v1, %s, s94 offen offset:%d" % (srd(SRD_WS), 8 * i))
        a("s_nop 1")
if STAMPS == 2:
    a("s_waitcnt vmcnt(0)")
    stamp(11)
    a("s_cmp_ge_u32 s%d, 28" % sR); a("s_cbranch_scc1 EXIT")
    a("s_and_b32 s94, s%d, 3" % sWAVE); a("s_cmp_lg_u32 s94, 0"); a("s_cbranch_scc1 EXIT")
    a("s_mov_b64 %s, s[84:85]" % sp(SRD_O)); a("s_mov_b32 s%d, 256" % (SRD_O + 2))
    a("s_lshl_b32 s94, s%d, 3" % sWAVE)
    a("v_mov_b32 v1, 0")
    a("s_mov_b64 exec, 1")
    a("s_not_b32 s95, s40")
    sel0 = [None, 0, 3, 4, 7, 9, 10, 11]
    sel4 = [1, 4, 5, 6, 8, 9, 10, 11]
    for i in range(8):
        a("s_cmp_eq_u32 s%d, 0" % sWAVE)
        a("s_cselect_b32 s96, %s, s%d" % ("s95" if sel0[i] is None else "s%d" % (40 + 2 * sel0[i]), 40 + 2 * sel4[i]))
        a("v_mov_b32 v4, s96")
        a("buffer_atomic_umax v4, v1, %s, s94 offen offset:%d sc1" % (srd(SRD_O), 4 * i))
        a("s_nop 1")
if int(opt["hold"]):
    if int(opt["holdx"]) >= 0:
        a("s_cmp_lg_u32 s%d, %d" % (sX8, int(opt["holdx"]))); a("s_cbranch_scc1 EXIT")
    a("s_add_u32 s40, s40, %d" % int(opt["hold"]))
    a("HOLD:")
    a("s_sleep 2")
    a("s_memrealtime s[42:43]"); a("s_waitcnt lgkmcnt(0)")
    a("s_sub_u32 s44, s42, s40"); a("s_cmp_lt_i32 s44, 0"); a("s_cbranch_scc1 HOLD")
a("EXIT:")
a("s_endpgm")
emit_retries()
a("V_REMOTE:")
a("s_add_u32 s95, s95, 0x%x" % (RB - RA)); a("s_add_u32 s96, s96, 0x%x" % (RB - RA))
a("s_mov_b64 exec, s[92:93]")
a("buffer_store_dwordx4 %s, v6, %s, s95 offen sc1" % (v4(STT), srd(SRD_WS)))
a("s_mov_b64 exec, -1")
a("s_nop 7")
o_epilogue()
a("buffer_store_dwordx4 %s, v7, %s, s96 offen sc1" % (v4(OO), srd(SRD_WS)))
a("s_branch V_PUB")
lines = hazard.fix(a.lines)
body = "\n".join(lines) + "\n"
body += ".fill 2600, 4, 0xbf810000\n"
open(sys.argv[1], "w").write(wrap(body, 256, 512, LDS_BYTES, vgpr=216))
```

```python
import sys, math, struct
from asmlib import *
import hazard
opt = dict(stamps="0", pol="nt", local="1", spin="20000", n1="6", b1wait="63", wfirst="0", warm="0", slp="1", rpol="sc1", rpipe="0", rslp="1", b2b="0", hold="0", holdx="-1", holdat="", ncopy="1", ackw="1", rstep="1", nv1="2", oslp="0", hlate="1", omask="1", lightpf="1", compact="1", touch="1", qloc="1", grot="1", nob="2", qwarm="0", cnt="0", early="0", eplain="1")
for x in sys.argv[2:]:
    k, v = x.split("="); opt[k] = v
POL = {"nt": " nt", "none": "", "sc1nt": " sc1 nt"}[opt["pol"]]
RPOL = {"sc1": " sc1", "sys": " sc0 sc1"}[opt["rpol"]]
STAMPS = int(opt["stamps"]); SPIN = int(opt["spin"]); N1 = int(opt["n1"]); WFIRST = int(opt["wfirst"]); SLP = int(opt["slp"])

RSTEP = int(opt["rstep"])
QP, HP, RA, RB, STO, FP = 0x10000, 0x90000, 0x100000, 0x200000, 0x80000, 0x300000
if opt["compact"] == "1": QP, HP, RA, RB, STO, FP = 0x8000, 0x88000, 0xD0000, 0x200000, 0x80000, 0x160000
DB = 0x400000
QLOC = opt["qloc"] == "1"
EARLY = opt["early"] == "1"
FLD = 0x200000
LT0, LT1, LW, LW2, LQ, LS, LRED, LFLAG = 0, 14336, 28672, 45056, 53248, 54272, 55296, 59392
LDS_BYTES = 98304
sWAVE, sX8, sR, sB, sS, sTAG, sSPIN, sXCC, sTGX = 3, 28, 29, 30, 31, 32, 33, 34, 35
SRD_X, SRD_KV, SRD_T, SRD_W2, SRD_WS, SRD_O = 4, 8, 12, 16, 20, 24
pX, pK, pV, pWQ, pWO, pW1, pB1, pW2, pOUT, pWS = 64, 66, 68, 70, 72, 76, 78, 80, 82, 86
sM1, sM2, sM3 = 88, 90, 92
LOG2E = 1.4426950408889634
def f2u(f): return struct.unpack("<I", struct.pack("<f", f))[0]
def srd(n): return "s[%d:%d]" % (n, n + 3)
def sp(n): return "s[%d:%d]" % (n, n + 1)
def v4(n): return "v[%d:%d]" % (n, n + 3)
def v2(n): return "v[%d:%d]" % (n, n + 1)
DPPM = " row_mask:0xf bank_mask:0xf"
MF = "v_mfma_f32_16x16x32_bf16"

a = Asm()
ROLE = ["V"]
def stamp(i):
    if opt["holdat"] == "%s%d" % (ROLE[0], i):
        a("s_memrealtime s[40:41]"); a("s_waitcnt lgkmcnt(0)")
    if STAMPS and i < 12:
        a("s_memrealtime s[%d:%d]" % (40 + 2 * i, 41 + 2 * i)); a("s_waitcnt lgkmcnt(0)")
def rows_allreduce(op, xs, ts):
    for sw in ("v_permlane16_swap_b32", "v_permlane32_swap_b32"):
        for x, t in zip(xs, ts): a("v_mov_b32 v%d, v%d" % (t, x))
        for x, t in zip(xs, ts): a("%s v%d, v%d" % (sw, x, t))
        for x, t in zip(xs, ts): a("%s v%d, v%d, v%d" % (op, x, x, t))
def dpp_red(op, x, ctrl): a("%s_dpp v%d, v%d, v%d %s%s" % (op, x, x, x, ctrl, DPPM))
def bf16_round(x):
    a("v_cvt_pk_bf16_f32 v%d, v%d, v%d" % (x, x, x)); a("v_lshlrev_b32 v%d, 16, v%d" % (x, x))
def check_tags(eq, xo=()):
    for t in eq: a("v_cmpx_eq_u32 vcc, s%d, v%d" % (sTAG, t))
    for t in xo:
        a("v_xor_b32 v%d, s%d, v%d" % (t, sTAG, t)); a("v_cmpx_gt_u32 vcc, 16, v%d" % t)
    a("s_cmp_eq_u64 exec, -1")
    a("s_mov_b64 exec, -1")
RETRY = []
def poll_check(name, issue, eq, xo=(), sleep=None):
    a("%s_chk:" % name)
    check_tags(eq, xo)
    a("s_cbranch_scc0 %s_retry" % name)
    a("%s_ok:" % name)
    a("s_nop 2")
    RETRY.append((name, issue, sleep))
def emit_retries():
    for name, issue, sleep in RETRY:
        a("%s_retry:" % name)
        a("s_cmp_eq_u32 s%d, 0" % sSPIN)
        a("s_cbranch_scc1 %s_ok" % name)
        a("s_sub_u32 s%d, s%d, 1" % (sSPIN, sSPIN))
        if sleep: a("s_sleep %d" % sleep)
        issue()
        a("s_waitcnt vmcnt(0)")
        a("s_branch %s_chk" % name)
def make_tag():
    a("s_waitcnt lgkmcnt(0)")
    a("s_mul_i32 s%d, s%d, 1664525" % (sTAG, sTAG)); a("s_add_u32 s%d, s%d, 1013904223" % (sTAG, sTAG))
def tr_addrs():
    a("v_lshrrev_b32 v12, 2, v0"); a("v_lshlrev_b32 v12, 7, v12"); a("v_lshl_add_u32 v12, v5, 3, v12")
    a("v_and_b32 v13, 3, v11"); a("v_lshl_add_u32 v12, v13, 5, v12")
    for tp in range(1, 4): a("v_xor_b32 v%d, %d, v12" % (12 + tp, 32 * tp))

a("s_cmp_ge_u32 s2, 256")
a("s_cbranch_scc1 EXIT")
if STAMPS or int(opt["hold"]): a("s_memrealtime s[40:41]")
a("s_load_dwordx16 s[64:79], s[0:1], 0")
a("s_load_dwordx8 s[80:87], s[0:1], 64")
a("s_getpc_b64 s[36:37]")
if opt["lightpf"] == "1":
    a("v_lshrrev_b32 v1, 6, v0")
    a("s_lshr_b32 s38, s2, 3"); a("s_mul_i32 s39, s38, 26"); a("s_lshr_b32 s39, s39, 8"); a("s_mul_i32 s39, s39, 10"); a("s_sub_u32 s38, s38, s39"); a("s_lshl_b32 s38, s38, 10")
    a("v_lshl_add_u32 v2, v1, 7, s38")
    a("global_load_dword v215, v2, s[36:37]")
else:
    a("v_mul_u32_u24 v1, 20, v0")
    a("global_load_dword v215, v1, s[36:37]")
    a("v_lshrrev_b32 v1, 6, v0")
a("v_and_b32 v0, 63, v0")
a("v_readfirstlane_b32 s%d, v1" % sWAVE)
a("s_and_b32 s%d, s2, 7" % sX8)
a("s_lshr_b32 s%d, s2, 3" % sR)
a("s_lshr_b32 s%d, s2, 6" % sB)
a("s_bfe_u32 s%d, s2, 0x30003" % sS)
a("s_getreg_b32 s%d, hwreg(HW_REG_XCC_ID, 0, 4)" % sXCC)
a("s_mov_b32 s%d, %d" % (sSPIN, SPIN))
for n, size in ((SRD_X, 3584), (SRD_KV, 1 << 26), (SRD_T, 448 * 8192), (SRD_W2, 1792 * 896), (SRD_WS, 1 << 28), (SRD_O, 3584)):
    a("s_mov_b32 s%d, 0x%x" % (n + 2, size)); a("s_mov_b32 s%d, 0x20000" % (n + 3))
a("s_lshl_b32 s36, s%d, 3" % sB); a("s_add_u32 s36, s36, s%d" % sX8); a("s_lshl_b32 s36, s36, 21")
a("s_lshl_b32 s38, s%d, 12" % sS)
GROT = opt["grot"]
if GROT == "1":
    a("s_lshl_b32 s93, s%d, 1" % sX8); a("s_mul_i32 s37, s%d, 5" % sB); a("s_add_u32 s93, s93, s37"); a("s_lshl_b32 s93, s93, 15"); a("s_and_b32 s93, s93, 0x78000")
elif GROT == "2":
    a("s_lshl_b32 s93, s%d, 2" % sB); a("s_add_u32 s93, s93, s%d" % sX8); a("s_lshl_b32 s93, s93, 15"); a("s_and_b32 s93, s93, 0x78000")
else: a("s_mov_b32 s93, 0")
a("s_add_u32 s36, s36, %d" % (3072 * 512))
a("v_lshrrev_b32 v4, 4, v0"); a("v_and_b32 v5, 3, v0"); a("v_bfe_u32 v3, v0, 2, 2"); a("v_lshrrev_b32 v11, 3, v0")
a("v_lshlrev_b32 v10, 1, v4"); a("v_xor_b32 v10, v10, v0"); a("v_and_b32 v10, 7, v10"); a("v_lshlrev_b32 v10, 4, v10")
a("s_lshl_b32 s39, s%d, 5" % sX8); a("s_add_u32 s39, s39, s%d" % sR)
a("s_mov_b32 s101, s93")
a("s_cmp_lg_u32 s%d, 0" % sWAVE)
a("s_cbranch_scc1 NOTW0")
XS, XF = 84, 100
a("s_setprio 3")
a("s_mul_i32 s98, s%d, %d" % (sB, 112 * 8192)); a("s_lshl_b32 s97, s%d, 10" % sX8); a("s_add_u32 s98, s98, s97")
a("s_lshl_b32 s97, s%d, 7" % sS); a("s_add_u32 s98, s98, s97")
a("s_mul_i32 s99, s%d, %d" % (sB, 112 * 3584)); a("s_mul_i32 s97, s%d, 448" % sX8); a("s_add_u32 s99, s99, s97")
a("s_lshl_b32 s97, s%d, 6" % sS); a("s_add_u32 s99, s99, s97")
a("s_cmp_eq_u32 s%d, 7" % sS); a("s_cselect_b32 s99, 0x40000000, s99")
a("v_mul_u32_u24 v6, 896, v3"); a("v_lshl_add_u32 v7, v4, 2, v5")
a("v_lshl_add_u32 v8, v4, 3, v6"); a("v_lshl_add_u32 v1, v7, 3, v6"); a("v_lshl_add_u32 v6, v7, 4, v6")
a("v_lshl_add_u32 v9, v11, 13, v10")
a("v_lshrrev_b32 v2, 2, v0"); a("v_mul_u32_u24 v2, 3584, v2"); a("v_and_b32 v7, 48, v10"); a("v_add_u32 v2, v2, v7")
a("s_mul_i32 s37, s%d, 224" % sB)
a("s_mov_b32 m0, %d" % LT0)
a("v_mov_b32 v16, 0"); a("v_mov_b32 v17, 0")
a("ds_write_b64 v16, v[16:17] offset:%d" % LFLAG); a("ds_write_b64 v16, v[16:17] offset:%d" % (LFLAG + 8))
a("s_waitcnt lgkmcnt(0)")
a("s_mov_b64 %s, %s" % (sp(SRD_T), sp(pWQ)))
a("s_mov_b64 %s, %s" % (sp(SRD_X), sp(pX)))
a("s_mov_b64 %s, %s" % (sp(SRD_W2), sp(pW1)))
for t in range(14):
    a("buffer_load_dwordx4 v9, %s, s98 offen%s lds" % (srd(SRD_T), POL))
    if t == 1:
        for i in range(3): a("buffer_load_dwordx4 %s, v6, %s, 0 offen offset:%d" % (v4(XS + 4 * i), srd(SRD_X), 256 * i))
        a("buffer_load_dwordx2 %s, v1, %s, 0 offen offset:768" % (v2(XS + 12), srd(SRD_X)))
        for m in range(7): a("buffer_load_dwordx2 %s, v8, %s, s37 offen offset:%d" % (v2(XF + 2 * m), srd(SRD_X), 32 * m))
    a("s_add_u32 m0, m0, 1024")
    if t < 13: a("s_add_u32 s98, s98, %d" % (8 * 8192))
for t in range(7):
    a("buffer_load_dwordx4 v2, %s, s99 offen%s lds" % (srd(SRD_W2), POL))
    if t < 6: a("s_add_u32 m0, m0, 1024"); a("s_add_u32 s99, s99, %d" % (16 * 3584))
a("s_load_dword s%d, %s, 0" % (sTAG, sp(pWS)))
a("s_mov_b64 %s, %s" % (sp(SRD_WS), sp(pWS)))
a("s_mov_b64 %s, %s" % (sp(SRD_KV), sp(pV)))
a("s_branch V_PROJ")

a("NOTW0:")
a("s_cmp_ge_u32 s%d, 4" % sWAVE)
a("s_waitcnt lgkmcnt(0)")
a("s_load_dword s%d, %s, 0" % (sTAG, sp(pWS)))
a("s_mov_b64 %s, %s" % (sp(SRD_WS), sp(pWS)))
a("s_cselect_b64 %s, %s, %s" % (sp(SRD_KV), sp(pK), sp(pV)))
a("s_cbranch_scc1 KWAVE")
if opt["warm"] == "1":
    a("s_lshl_b32 s94, s39, 11"); a("s_lshl_b32 s95, s%d, 10" % sWAVE); a("s_add_u32 s94, s94, s95"); a("s_add_u32 s94, s94, 0x%x" % (RA - 1024))
    a("s_lshl_b32 s95, s%d, 10" % sX8); a("s_add_u32 s95, s95, 0x%x" % (RA + STO))
    a("s_cmp_eq_u32 s%d, 3" % sWAVE); a("s_cselect_b32 s94, s95, s94")
    a("v_lshlrev_b32 v1, 4, v0")
if opt["qwarm"] != "0":
    a("s_lshl_b32 s94, s39, 11"); a("s_lshl_b32 s95, s%d, 10" % sWAVE); a("s_add_u32 s94, s94, s95"); a("s_add_u32 s94, s94, 0x%x" % (QP - 1024))
    a("s_lshl_b32 s95, s39, 10"); a("s_add_u32 s95, s95, 0x%x" % HP)
    a("s_cmp_eq_u32 s%d, 3" % sWAVE); a("s_cselect_b32 s94, s95, s94")
    a("v_lshlrev_b32 v1, 4, v0")
    if opt["qwarm"] == "1": a("buffer_load_dwordx4 v[212:215], v1, %s, s94 offen sc1" % srd(SRD_WS))
a("s_barrier")
if opt["qwarm"] == "2": a("buffer_load_dwordx4 v[212:215], v1, %s, s94 offen sc1" % srd(SRD_WS))
if opt["warm"] == "1":
    a("buffer_load_dwordx4 v[212:215], v1, %s, s94 offen sc1" % srd(SRD_WS))
make_tag()
a("s_branch V_B2")

a("KWAVE:")
ROLE[0] = "K"
KR = 16
a("s_sub_u32 s%d, s%d, 4" % (sWAVE, sWAVE))
a("s_setprio 2")
a("v_lshlrev_b32 v1, 9, v3"); a("v_lshl_add_u32 v1, v4, 6, v1"); a("v_lshl_add_u32 v1, v5, 4, v1")
a("s_lshr_b32 s37, s%d, 1" % sWAVE); a("s_lshl_b32 s94, s37, 14"); a("s_xor_b32 s38, s38, s94"); a("s_lshl_b32 s37, s37, 18"); a("s_xor_b32 s93, s93, s37")
a("s_and_b32 s37, s%d, 1" % sWAVE); a("s_lshl_b32 s37, s37, 11"); a("s_add_u32 s36, s36, s37")
a("s_barrier")
def kload(i):
    if not i & 1: a("s_or_b32 s37, s93, s38"); a("s_add_u32 s37, s36, s37")
    a("buffer_load_dwordx4 %s, v1, %s, s37 offen offset:%d%s" % (v4(KR + 4 * i), srd(SRD_KV), (i & 1) * 256, POL))
    if i & 1 and i < 15:
        a("s_add_u32 s93, s93, 32768"); a("s_and_b32 s93, s93, 0x78000"); a("s_add_u32 s38, s38, %d" % (4096 * RSTEP)); a("s_and_b32 s38, s38, 0x7000")
for i in range(N1): kload(i)
stamp(1)
a("s_branch K_MAIN")

a("V_PROJ:")
ROLE[0] = "V"
tr_addrs()
a("s_mov_b32 s37, 0x3f803f80")
a("v_mov_b32 v6, 0"); a("v_mov_b32 v7, 0")
WF, DT, PB = 116, 180, 196
for r in [XF + 14, XF + 15] + [WF + 16 * tp + k for tp in range(4) for k in (14, 15)]: a("v_mov_b32 v%d, 0" % r)
for nn, val in ((sM1, 0x22222222), (sM2, 0x44444444), (sM3, 0x88888888)):
    a("s_mov_b32 s%d, 0x%x" % (nn, val)); a("s_mov_b32 s%d, 0x%x" % (nn + 1, val))
a("v_lshlrev_b32 v2, 6, v4"); a("v_lshl_add_u32 v2, v5, 4, v2")
a("v_lshl_add_u32 v1, v3, 9, v2")
a("v_lshl_add_u32 v2, v3, 8, v2")
a("v_lshrrev_b32 v80, 2, v0"); a("v_lshlrev_b32 v80, 6, v80"); a("v_lshl_add_u32 v80, v5, 3, v80")
a("v_and_b32 v81, 1, v4"); a("v_lshl_add_u32 v80, v81, 5, v80"); a("v_xor_b32 v81, 32, v80")
a("s_lshl_b32 s98, s39, 11"); a("s_add_u32 s98, s98, 0x%x" % QP)
a("s_lshl_b32 s99, s39, 10"); a("s_add_u32 s99, s99, 0x%x" % HP)
if int(opt["b1wait"]) < 63: a("s_waitcnt vmcnt(%d)" % int(opt["b1wait"]))
a("s_barrier")
stamp(1)
a("s_waitcnt vmcnt(26)")
for i in range(14):
    a("v_dot2c_f32_bf16 v6, s37, v%d" % (XS + i)); a("v_dot2c_f32_bf16 v7, v%d, v%d" % (XS + i, XS + i))
for x in (6, 7): dpp_red("v_add_f32", x, "quad_perm:[1,0,3,2]")
for x in (6, 7): dpp_red("v_add_f32", x, "quad_perm:[2,3,0,1]")
rows_allreduce("v_add_f32", (6, 7), (8, 9))
a("v_mul_f32 v6, 0x%x, v6" % f2u(1.0 / 448)); a("v_mul_f32 v7, 0x%x, v7" % f2u(1.0 / 448))
a("v_fma_f32 v7, -v6, v6, v7"); a("v_max_f32 v7, 0, v7")
bf16_round(7); a("v_add_f32 v7, 0x%x, v7" % f2u(1e-5)); bf16_round(7)
a("v_sqrt_f32 v7, v7"); bf16_round(6); bf16_round(7); a("v_rcp_f32 v7, v7")
a("s_waitcnt vmcnt(19)")
a("v_mul_f32 v6, v6, v7")
for i in range(14):
    r = XF + i; t = XS + 2 * (i & 1)
    a("v_lshlrev_b32 v%d, 16, v%d" % (t, r)); a("v_and_b32 v%d, 0xffff0000, v%d" % (t + 1, r))
    a("v_fma_f32 v%d, v%d, v7, -v6" % (t, t)); a("v_fma_f32 v%d, v%d, v7, -v6" % (t + 1, t + 1))
    a("v_cvt_pk_bf16_f32 v%d, v%d, v%d" % (r, t, t + 1))
make_tag()
a("s_xor_b32 s%d, s%d, s%d" % (sTGX, sTAG, sXCC))
for i in (1, 5, 9): a("v_mov_b32 v%d, s%d" % (PB + i, sTAG))
for i in (3, 7, 11): a("v_mov_b32 v%d, s%d" % (PB + i, sTGX))
stamp(2)
a("s_waitcnt vmcnt(7)")
stamp(3)
def proj_mfma(q, d):
    for u in range(4): a("%s %s, %s, %s, %s" % (MF, v4(d), v4(WF + 16 * q + 4 * u), v4(XF + 4 * u), "0" if u == 0 else v4(d)))
for tp in range(4):
    for m in range(7): a("ds_read_b64_tr_b16 %s, v%d offset:%d" % (v2(WF + 16 * tp + 2 * m), 12 + tp, LT0 + 2048 * m))
    if tp >= 1:
        a("s_waitcnt lgkmcnt(7)"); proj_mfma(tp - 1, DT + 4 * (tp - 1))
a("s_waitcnt lgkmcnt(0)")
proj_mfma(3, DT + 12)
for r in range(4): a("v_cndmask_b32 v%d, v%d, v%d, %s" % (PB + 2 * r, DT + r, DT + 4 + r, sp(sM1)))
for r in range(4): a("v_cndmask_b32 v%d, v%d, v%d, %s" % (PB + 2 * r, PB + 2 * r, DT + 8 + r, sp(sM2)))
for r in range(4): a("v_cndmask_b32 v%d, v%d, v%d, %s" % (PB + 2 * r, PB + 2 * r, DT + 12 + r, sp(sM3)))
QS = "" if QLOC else " sc1"
a("buffer_store_dwordx4 %s, v1, %s, s98 offen%s" % (v4(PB), srd(SRD_WS), QS))
a("buffer_store_dwordx4 %s, v1, %s, s98 offen offset:256%s" % (v4(PB + 4), srd(SRD_WS), QS))
a("s_waitcnt vmcnt(2)")
for tp in range(2):
    for m in range(7): a("ds_read_b64_tr_b16 %s, v%d offset:%d" % (v2(WF + 16 * tp + 2 * m), 80 + tp, LT1 + 1024 * m))
a("s_waitcnt lgkmcnt(7)"); proj_mfma(0, DT)
a("s_waitcnt lgkmcnt(0)"); proj_mfma(1, DT + 4)
for k in range(2):
    a("v_cndmask_b32 v%d, v%d, v%d, %s" % (PB + 8 + 2 * k, DT + k, DT + 2 + k, sp(sM2)))
for k in range(2):
    a("v_cndmask_b32 v%d, v%d, v%d, %s" % (PB + 8 + 2 * k, PB + 8 + 2 * k, DT + 4 + k, sp(sM1)))
for k in range(2):
    a("v_cndmask_b32 v%d, v%d, v%d, %s" % (PB + 8 + 2 * k, PB + 8 + 2 * k, DT + 6 + k, sp(sM3)))
a("buffer_store_dwordx4 %s, v2, %s, s99 offen%s" % (v4(PB + 8), srd(SRD_WS), QS))
if QLOC and opt["nob"] == "0":
    a("s_add_u32 s98, s98, 0x%x" % DB); a("s_add_u32 s99, s99, 0x%x" % DB)
    a("buffer_store_dwordx4 %s, v1, %s, s98 offen sc1" % (v4(PB), srd(SRD_WS)))
    a("buffer_store_dwordx4 %s, v1, %s, s98 offen offset:256 sc1" % (v4(PB + 4), srd(SRD_WS)))
    a("buffer_store_dwordx4 %s, v2, %s, s99 offen sc1" % (v4(PB + 8), srd(SRD_WS)))
a("s_setprio 0")
a("V_B2:")
stamp(4)
a("s_barrier")
VR, VF, DV = 16, 80, 144
a("v_lshlrev_b32 v1, 9, v11"); a("v_and_b32 v6, 7, v0"); a("v_lshl_add_u32 v1, v6, 4, v1")
a("s_lshl_b32 s37, s%d, 7" % sWAVE); a("s_add_u32 s36, s36, s37")
a("s_mov_b32 s98, 0x05040100"); a("s_mov_b32 s99, 0x07060302")
a("v_bfe_u32 v6, v0, 2, 1"); a("v_lshlrev_b32 v8, 9, v6"); a("v_lshl_add_u32 v8, v4, 6, v8")
a("v_and_b32 v7, 1, v0"); a("v_lshl_add_u32 v8, v7, 5, v8"); a("v_lshlrev_b32 v6, 9, v6")
SS, PFR, STT, TT, OO = 176, 192, 200, 204, 208
a("s_lshl_b32 s95, s%d, 10" % sX8); a("s_lshl_b32 s96, s%d, 4" % sR); a("s_add_u32 s95, s95, s96"); a("s_add_u32 s95, s95, 0x%x" % (RA + STO))
a("s_lshl_b32 s96, s%d, 16" % sX8); a("s_lshl_b32 s97, s%d, 13" % sWAVE); a("s_add_u32 s96, s96, s97")
a("s_lshr_b32 s97, s%d, 2" % sS); a("s_lshl_b32 s97, s97, 11"); a("s_add_u32 s96, s96, s97")
a("s_lshl_b32 s97, s%d, 6" % sB); a("s_add_u32 s96, s96, s97"); a("s_and_b32 s97, s%d, 3" % sS); a("s_lshl_b32 s97, s97, 4"); a("s_add_u32 s96, s96, s97")
a("s_add_u32 s96, s96, 0x%x" % RA)
a("v_bfe_u32 v9, v0, 4, 1"); a("v_lshlrev_b32 v9, 15, v9"); a("v_lshl_add_u32 v9, v7, 9, v9")
a("v_bfe_u32 v7, v0, 2, 1"); a("v_lshl_add_u32 v9, v7, 12, v9"); a("v_bfe_u32 v7, v0, 1, 1"); a("v_lshl_add_u32 v9, v7, 10, v9")
a("v_bfe_u32 v7, v0, 3, 1"); a("v_lshl_add_u32 v7, v7, 8, v9")
a("v_mov_b32 v2, 0")
a("s_mov_b32 s100, 0x%x" % f2u(LOG2E / 16))
if opt["b2b"] == "1": a("s_barrier")
stamp(5)
for i in range(16):
    if int(opt["nv1"]) and i == int(opt["nv1"]): a("s_barrier")
    a("s_or_b32 s37, s101, s38"); a("s_add_u32 s37, s36, s37")
    a("buffer_load_dwordx4 %s, v1, %s, s37 offen%s" % (v4(VR + 4 * i), srd(SRD_KV), POL))
    if i < 15:
        a("s_add_u32 s101, s101, 32768"); a("s_and_b32 s101, s101, 0x78000"); a("s_add_u32 s38, s38, %d" % (4096 * (RSTEP + (4 if i == 7 else 0)))); a("s_and_b32 s38, s38, 0x7000")
for r in (STT + 1, STT + 3, OO + 1, OO + 3): a("v_mov_b32 v%d, s%d" % (r, sTAG))
a("s_bitcmp1_b32 s%d, 0" % sWAVE); a("s_cselect_b32 s92, 16, 1"); a("s_mov_b32 s93, 0")
stamp(6)
a("s_barrier")
stamp(7)
def vperm(pair):
    G, i = pair >> 2, pair & 3
    for m in range(4):
        A = VR + 4 * (2 * pair) + m; B = A + 4
        a("v_perm_b32 v%d, v%d, v%d, s98" % (VF + 32 * G + 4 * (2 * m) + i, B, A))
        a("v_perm_b32 v%d, v%d, v%d, s99" % (VF + 32 * G + 4 * (2 * m + 1) + i, B, A))
for k, off in enumerate((0, 16, 256, 272)): a("ds_read_b128 %s, v8 offset:%d" % (v4(SS + 4 * k), LS + off))
a("ds_read_b128 %s, v2 offset:%d" % (v4(TT), LFLAG))
a("s_waitcnt lgkmcnt(0)")
a("v_min3_u32 v2, v%d, v%d, v%d" % (TT, TT + 1, TT + 2)); a("v_min_u32 v2, v2, v%d" % (TT + 3))
a("v_readfirstlane_b32 s101, v2")
a("v_max3_f32 v8, v%d, v%d, v%d" % (SS, SS + 1, SS + 2)); a("v_max3_f32 v9, v%d, v%d, v%d" % (SS + 3, SS + 4, SS + 5))
a("v_max3_f32 v8, v8, v%d, v%d" % (SS + 6, SS + 7)); a("v_max3_f32 v9, v9, v%d, v%d" % (SS + 8, SS + 9))
a("v_max3_f32 v8, v8, v%d, v%d" % (SS + 10, SS + 11)); a("v_max3_f32 v9, v9, v%d, v%d" % (SS + 12, SS + 13))
a("v_max3_f32 v8, v8, v%d, v%d" % (SS + 14, SS + 15)); a("v_max_f32 v8, v8, v9")
dpp_red("v_max_f32", 8, "quad_perm:[1,0,3,2]")
rows_allreduce("v_max_f32", (8,), (9,))
a("v_mul_f32 v%d, s100, v8" % STT)
for k in range(16): a("v_fma_f32 v%d, v%d, s100, -v%d" % (SS + k, SS + k, STT))
for k in range(16): a("v_exp_f32 v%d, v%d" % (SS + k, SS + k))
for k in range(8): a("v_cvt_pk_bf16_f32 v%d, v%d, v%d" % (PFR + k, SS + 2 * k, SS + 2 * k + 1))
for k in range(8): a("v_add_f32 v%d, v%d, v%d" % (SS + k, SS + k, SS + 8 + k))
for k in range(4): a("v_add_f32 v%d, v%d, v%d" % (SS + k, SS + k, SS + 4 + k))
a("v_add_f32 v%d, v%d, v%d" % (SS, SS, SS + 2)); a("v_add_f32 v%d, v%d, v%d" % (SS + 1, SS + 1, SS + 3))
a("v_add_f32 v%d, v%d, v%d" % (STT + 2, SS, SS + 1))
dpp_red("v_add_f32", STT + 2, "quad_perm:[1,0,3,2]")
rows_allreduce("v_add_f32", (STT + 2,), (9,))
def pv_mfma(G):
    for j in range(8): a("%s %s, %s, %s, %s" % (MF, v4(DV + 4 * j), v4(PFR + 4 * G), v4(VF + 32 * G + 4 * j), "0" if G == 0 else v4(DV + 4 * j)))
for p in range(8):
    a("s_waitcnt vmcnt(%d)" % (16 - 2 * (p + 1))); vperm(p)
    if p == 3: pv_mfma(0)
stamp(8)
pv_mfma(1)
a("s_cmp_eq_u32 s101, %d" % (2 if opt["local"] == "1" else 3))
a("s_cbranch_scc0 V_REMOTE")
a("s_mov_b64 exec, s[92:93]")
a("buffer_store_dwordx4 %s, v6, %s, s95 offen" % (v4(STT), srd(SRD_WS)))
a("s_mov_b64 exec, -1")
def o_epilogue():
    for j in range(4): a("v_add_f32_dpp v%d, v%d, v%d row_ror:8 row_mask:0xf bank_mask:0x3" % (TT + j, DV + 4 * j + 1, DV + 4 * j))
    for j in range(4, 8): a("v_add_f32_dpp v%d, v%d, v%d row_ror:8 row_mask:0xf bank_mask:0xc" % (TT + j - 4, DV + 4 * j, DV + 4 * j + 1))
    a("v_cvt_pk_bf16_f32 v%d, v%d, v%d" % (OO, TT, TT + 1)); a("v_cvt_pk_bf16_f32 v%d, v%d, v%d" % (OO + 2, TT + 2, TT + 3))
    a("s_mov_b32 exec_hi, 0")
o_epilogue()
a("buffer_store_dwordx4 %s, v7, %s, s96 offen" % (v4(OO), srd(SRD_WS)))
a("V_PUB:")
a("s_mov_b64 exec, -1")
stamp(9)
a("s_cmp_ge_u32 s%d, 28" % sR)
a("s_cbranch_scc1 FINISH")
a("s_barrier")
a("s_barrier")
a("s_branch FINISH")

a("K_MAIN:")
ROLE[0] = "K"
a("s_and_b32 s88, s%d, 3" % sR); a("s_lshr_b32 s89, s%d, 2" % sR)
a("s_mov_b64 %s, %s" % (sp(SRD_T), sp(pWO))); a("s_mov_b64 %s, %s" % (sp(SRD_W2), sp(pW2))); a("s_mov_b64 %s, %s" % (sp(SRD_O), sp(pB1)))
a("s_mov_b64 %s, %s" % (sp(SRD_X), sp(pX)))
a("s_lshl_b32 s92, s%d, 12" % sWAVE)
a("s_lshl_b32 s90, s%d, 2" % sWAVE); a("s_add_u32 s90, s90, s88")
a("s_mul_i32 s91, s%d, 7" % sX8); a("s_add_u32 s91, s91, s90")
a("s_cmp_ge_u32 s%d, 28" % sR); a("s_cselect_b32 s90, 7, s90")
a("s_lshl_b32 s64, s%d, 4" % sX8); a("s_lshl_b32 s97, s88, 2"); a("s_add_u32 s64, s64, s97"); a("s_add_u32 s64, s64, s%d" % sWAVE)
a("s_mul_i32 s64, s64, %d" % (32 * 896)); a("s_lshl_b32 s97, s89, 7"); a("s_add_u32 s64, s64, s97")
a("s_mul_i32 s65, s91, %d" % (32 * 896)); a("s_add_u32 s65, s65, s97")
a("s_lshl_b32 s94, s%d, 16" % sX8); a("s_add_u32 s94, s94, s92")
a("s_lshl_b32 s95, s%d, 9" % sB); a("s_add_u32 s94, s94, s95"); a("s_add_u32 s94, s94, 0x%x" % QP)
for k in range(1, 4): a("s_add_u32 s%d, s94, %d" % (94 + k, 16384 * k))
a("s_lshl_b32 s66, s%d, 5" % sX8); a("s_add_u32 s66, s66, s90"); a("s_lshl_b32 s66, s66, 10"); a("s_add_u32 s66, s66, 0x%x" % HP)
a("s_lshl_b32 s67, s91, 6")
a("s_lshl_b32 s68, s%d, 1" % sX8); a("s_lshr_b32 s99, s88, 1"); a("s_add_u32 s68, s68, s99"); a("s_lshl_b32 s68, s68, 9"); a("s_add_u32 s68, s68, 0x%x" % (RA + STO))
a("s_lshl_b32 s69, s%d, 16" % sX8); a("s_lshl_b32 s99, s88, 14"); a("s_add_u32 s69, s69, s99"); a("s_add_u32 s69, s69, s92"); a("s_add_u32 s69, s69, 0x%x" % RA)
for k in range(1, 4): a("s_add_u32 s%d, s66, %d" % (72 + k, 8192 * k))
a("s_lshl_b32 s71, s89, 5"); a("s_lshl_b32 s99, s%d, 2" % sX8); a("s_add_u32 s71, s71, s99"); a("s_add_u32 s71, s71, s88")
a("s_and_b32 s100, s%d, 1" % sWAVE)
a("s_lshl_b32 s71, s71, 1"); a("s_add_u32 s71, s71, s100"); a("s_lshl_b32 s71, s71, 10"); a("s_add_u32 s71, s71, 0x%x" % FP)
a("s_and_b32 s76, s%d, 3" % sX8); a("s_mul_i32 s76, s76, 896"); a("s_lshl_b32 s99, s89, 7"); a("s_add_u32 s76, s76, s99")
a("s_lshr_b32 s99, s%d, 2" % sX8); a("s_lshl_b32 s99, s99, 6"); a("s_add_u32 s76, s76, s99"); a("s_lshl_b32 s99, s88, 3"); a("s_add_u32 s76, s76, s99")
a("s_lshl_b32 s77, s%d, 2" % sX8); a("s_add_u32 s77, s77, s88"); a("s_lshl_b32 s77, s77, 6"); a("s_lshl_b32 s99, s89, 16"); a("s_add_u32 s77, s77, s99"); a("s_add_u32 s77, s77, 0x%x" % FP)
a("v_lshlrev_b32 v204, 1, v5")
a("v_lshrrev_b32 v205, 2, v0"); a("v_lshlrev_b32 v205, 11, v205"); a("v_lshl_add_u32 v205, v5, 4, v205")
tr_addrs()
for tp in range(4): a("v_add_u32 v%d, s92, v%d" % (12 + tp, 12 + tp))
vWD, vQG, vQW, vQR, vSW, vBI, vHG, vST, vOG, vRW, vRR, vL16, vFL, vZ = 184, 185, 186, 187, 188, 189, 190, 191, 192, 193, 194, 195, 196, 197
a("v_mul_u32_u24 v%d, 896, v11" % vWD); a("v_add_u32 v%d, v%d, v10" % (vWD, vWD))
a("v_lshrrev_b32 v7, 5, v0"); a("v_bfe_u32 v9, v0, 4, 1")
a("v_lshlrev_b32 v6, 11, v7"); a("v_and_b32 v8, 31, v0"); a("v_lshl_add_u32 v%d, v8, 4, v6" % vQG)
a("v_lshlrev_b32 v6, 7, v7"); a("v_lshl_add_u32 v6, v5, 5, v6"); a("v_lshl_add_u32 v6, v3, 3, v6"); a("v_lshl_add_u32 v6, v9, 2, v6")
a("s_lshl_b32 s98, s%d, 8" % sWAVE); a("v_add_u32 v%d, s98, v6" % vQW)
a("v_bfe_u32 v6, v0, 2, 1"); a("v_lshlrev_b32 v6, 9, v6"); a("v_lshl_add_u32 v6, v4, 6, v6"); a("v_lshl_add_u32 v%d, v5, 4, v6" % vQR)
a("v_lshlrev_b32 v6, 9, v9"); a("v_lshl_add_u32 v6, v3, 5, v6"); a("s_lshl_b32 s98, s%d, 7" % sWAVE)
a("v_add_u32 v%d, s98, v6" % vSW)
a("v_and_b32 v6, 1, v0"); a("v_lshlrev_b32 v6, 5, v6"); a("v_lshl_add_u32 v6, v4, 3, v6"); a("v_bfe_u32 v8, v0, 1, 1"); a("v_lshl_add_u32 v%d, v8, 2, v6" % vBI)
a("v_lshlrev_b32 v6, 4, v5"); a("v_lshl_add_u32 v6, v3, 8, v6"); a("v_lshl_add_u32 v%d, v4, 6, v6" % vHG)
a("v_and_b32 v6, 7, v0"); a("v_lshl_add_u32 v6, v4, 3, v6"); a("v_lshlrev_b32 v%d, 4, v6" % vST)
a("v_lshlrev_b32 v%d, 4, v0" % vL16)
a("s_lshl_b32 s98, s%d, 10" % sWAVE); a("v_add_u32 v%d, s98, v%d" % (vRW, vL16))
a("s_lshl_b32 s98, s100, 3"); a("v_add_u32 v%d, s98, v%d" % (vRR, vL16))
a("s_lshl_b32 s98, s%d, 2" % sWAVE); a("v_mov_b32 v%d, s98" % vFL); a("v_mov_b32 v%d, 0" % vZ)
ACC, PO = 156, 160
for i in range(4): a("v_mov_b32 v%d, 0" % (ACC + i))
make_tag()
a("v_mov_b32 v%d, s%d" % (PO + 1, sTAG)); a("v_mov_b32 v%d, s%d" % (PO + 3, sTAG))
QG, HB, HG, SG, OG = 84, 164, 168, 200, 100
def issue_q():
    for k in range(4): a("buffer_load_dwordx4 %s, v%d, %s, s%d offen sc1" % (v4(QG + 4 * k), vQG, srd(SRD_WS), 94 + k))
def issue_h():
    for k, so in enumerate((66, 73, 74, 75)): a("buffer_load_dwordx4 %s, v%d, %s, s%d offen sc1" % (v4(HG + 4 * k), vHG, srd(SRD_WS), so))
def issue_o():
    for hf in range(2):
        for z in range(2): a("buffer_load_dwordx4 %s, v%d, %s, s69 offen offset:%d sc1" % (v4(OG + 8 * hf + 4 * z), vL16, srd(SRD_WS), 2048 * hf + 1024 * z))
    a("buffer_load_dwordx4 %s, v%d, %s, s68 offen sc1" % (v4(SG), vST, srd(SRD_WS)))
def wdma(s, so):
    for t in range(4):
        a("buffer_load_dwordx4 v%d, %s, s%d offen%s lds" % (vWD, srd(s), so, POL))
        if t < 3: a("s_add_u32 m0, m0, 1024"); a("s_add_u32 s%d, s%d, %d" % (so, so, 8 * 896))
def issue_w(lbl):
    a("s_add_u32 m0, s92, %d" % LW)
    wdma(SRD_T, 64)
    a("s_cmp_ge_u32 s90, 7"); a("s_cbranch_scc1 %s" % lbl)
    a("s_add_u32 m0, s92, %d" % LW2)
    wdma(SRD_W2, 65)
    a("%s:" % lbl)
if opt["touch"] == "1":
    a("s_mov_b64 exec, 1")
    a("s_cmp_eq_u32 s%d, 0" % sWAVE); a("s_cbranch_scc0 T1"); a("buffer_load_dword v214, v%d, %s, s64 offen" % (vZ, srd(SRD_T))); a("T1:")
    a("s_cmp_eq_u32 s%d, 1" % sWAVE); a("s_cbranch_scc0 T2"); a("buffer_load_dword v214, v%d, %s, s65 offen" % (vZ, srd(SRD_W2))); a("T2:")
    a("s_cmp_eq_u32 s%d, 2" % sWAVE); a("s_cbranch_scc0 T3"); a("global_load_dword v214, v%d, %s" % (vZ, sp(pOUT))); a("T3:")
    a("s_cmp_eq_u32 s%d, 3" % sWAVE); a("s_cbranch_scc0 T4"); a("buffer_load_dword v214, v%d, %s, 0 offen" % (vZ, srd(SRD_O))); a("T4:")
    a("s_mov_b64 exec, -1")
stamp(2)
a("s_barrier")
for i in range(N1, 16): kload(i)
if int(opt["nv1"]): a("s_barrier")
def small_loads(lbl):
    if EARLY:
        a("s_cmp_lg_u32 s%d, 3" % sWAVE); a("s_cbranch_scc1 K_NOT")
        a("s_cmp_ge_u32 s%d, 4" % sX8); a("s_cselect_b32 s99, s78, s77"); a("s_mov_b64 exec, s[84:85]")
        a("buffer_load_dword v208, v198, %s, s99 offen sc1" % srd(SRD_WS))
        a("s_mov_b64 exec, -1")
        a("K_NOT:")
    a("buffer_load_ushort v206, v204, %s, s76 offen" % srd(SRD_X)); a("buffer_load_ushort v207, v204, %s, s76 offen offset:32" % srd(SRD_X))
    a("s_cmp_ge_u32 s90, 7"); a("s_cbranch_scc1 %s" % lbl)
    a("buffer_load_dword v%d, v%d, %s, s67 offen" % (HB, vBI, srd(SRD_O)))
    issue_h()
    a("%s:" % lbl)
if opt["hlate"] != "1":
    a("s_cmp_ge_u32 s%d, 28" % sR); a("s_cbranch_scc1 K_NOH")
    small_loads("K_NOH")
issue_q()
stamp(3)
if opt["b2b"] == "1": a("s_barrier")
a("s_waitcnt vmcnt(0)")
def copy_b():
    a("s_lshl_b32 s98, s39, 11"); a("s_add_u32 s98, s98, 0x%x" % QP)
    a("s_lshl_b32 s99, s39, 10"); a("s_add_u32 s99, s99, 0x%x" % HP)
    a("buffer_load_dwordx4 v[116:119], v%d, %s, s98 offen sc1" % (vL16, srd(SRD_WS)))
    a("buffer_load_dwordx4 v[120:123], v%d, %s, s98 offen offset:1024 sc1" % (vL16, srd(SRD_WS)))
    a("buffer_load_dwordx4 v[124:127], v%d, %s, s99 offen sc1" % (vL16, srd(SRD_WS)))
    a("s_add_u32 s98, s98, 0x%x" % DB); a("s_add_u32 s99, s99, 0x%x" % DB)
    a("s_waitcnt vmcnt(0)")
    a("buffer_store_dwordx4 v[116:119], v%d, %s, s98 offen sc1" % (vL16, srd(SRD_WS)))
    a("buffer_store_dwordx4 v[120:123], v%d, %s, s98 offen offset:1024 sc1" % (vL16, srd(SRD_WS)))
    a("buffer_store_dwordx4 v[124:127], v%d, %s, s99 offen sc1" % (vL16, srd(SRD_WS)))
def retry_q():
    issue_q()
    if QLOC:
        for k in range(4): a("s_xor_b32 s%d, s%d, 0x%x" % (94 + k, 94 + k, DB))
        if opt["nob"] == "2":
            a("s_bitcmp1_b32 s94, 22"); a("s_cbranch_scc1 PQ_nocopy")
            copy_b()
            a("PQ_nocopy:")
def retry_h():
    issue_h()
    if QLOC:
        for so in (66, 73, 74, 75): a("s_xor_b32 s%d, s%d, 0x%x" % (so, so, DB))
poll_check("PQ", retry_q, [QG + 4 * k + 1 for k in range(4)], [QG + 4 * k + 3 for k in range(4)], sleep=SLP)
stamp(4)
if opt["cnt"] == "1":
    a("s_sub_u32 s44, %d, s%d" % (SPIN, sSPIN)); a("s_mul_i32 s44, s44, 10000"); a("s_add_u32 s44, s44, s40"); a("s_addc_u32 s45, s41, 0")
a("v_add_f32 v%d, v%d, v%d" % (QG, QG, QG + 4)); a("v_add_f32 v%d, v%d, v%d" % (QG + 2, QG + 2, QG + 6))
a("v_add_f32 v%d, v%d, v%d" % (QG + 8, QG + 8, QG + 12)); a("v_add_f32 v%d, v%d, v%d" % (QG + 10, QG + 10, QG + 14))
a("v_add_f32 v%d, v%d, v%d" % (QG, QG, QG + 8)); a("v_add_f32 v%d, v%d, v%d" % (QG + 2, QG + 2, QG + 10))
a("v_cvt_pk_bf16_f32 v%d, v%d, v%d" % (QG, QG, QG + 2))
a("ds_write_b32 v%d, v%d offset:%d" % (vQW, QG, LQ))
for k in range(4): a("v_cmpx_eq_u32 vcc, s%d, v%d" % (sXCC, QG + 4 * k + 3))
a("s_cmp_eq_u64 exec, -1"); a("s_mov_b64 exec, -1")
if QLOC and opt["nob"] == "2":
    a("s_cbranch_scc0 K_COPYB")
    a("K_COPYB_ret:")
a("s_cselect_b32 s98, 2, 1")
a("v_mov_b32 v82, s98")
a("s_waitcnt lgkmcnt(0)")
a("ds_write_b32 v%d, v82 offset:%d" % (vFL, LFLAG))
a("s_mov_b32 s99, %d" % (SPIN * 16))
a("PF:")
a("ds_read_b128 %s, v%d offset:%d" % (v4(QG + 4), vZ, LFLAG))
a("s_waitcnt lgkmcnt(0)")
a("v_min3_u32 v82, v%d, v%d, v%d" % (QG + 4, QG + 5, QG + 6)); a("v_min_u32 v82, v82, v%d" % (QG + 7))
a("v_readfirstlane_b32 s101, v82")
a("s_cmp_lg_u32 s101, 0")
a("s_cbranch_scc1 PF_ok")
a("s_sub_u32 s99, s99, 1")
a("s_cbranch_scc0 PF")
a("PF_ok:")
QF = 92
a("ds_read_b128 %s, v%d offset:%d" % (v4(QF), vQR, LQ)); a("ds_read_b128 %s, v%d offset:%d" % (v4(QF + 4), vQR, LQ + 256))
DQ, SC = 116, 148
a("s_waitcnt lgkmcnt(0)")
for t in range(8): a("%s %s, %s, %s, 0" % (MF, v4(DQ + 4 * t), v4(QF), v4(KR + 8 * t)))
for t in range(8): a("%s %s, %s, %s, %s" % (MF, v4(DQ + 4 * t), v4(QF + 4), v4(KR + 8 * t + 4), v4(DQ + 4 * t)))
for r in range(4):
    for t in range(8):
        qp = "quad_perm:[%d,%d,%d,%d]" % (r, r, r, r)
        if r == 0: a("v_mov_b32_dpp v%d, v%d %s%s" % (SC + t, DQ + 4 * t, qp, DPPM))
        else: a("v_add_f32_dpp v%d, v%d, v%d %s%s" % (SC + t, DQ + 4 * t + r, SC + t, qp, DPPM))
a("ds_write_b128 v%d, %s offset:%d" % (vSW, v4(SC), LS)); a("ds_write_b128 v%d, %s offset:%d" % (vSW, v4(SC + 4), LS + 16))
a("s_cmp_eq_u32 s101, %d" % (2 if opt["local"] == "1" else 3)); a("s_cselect_b32 s98, 0, 0x%x" % (RB - RA))
for r in (68, 69): a("s_add_u32 s%d, s%d, s98" % (r, r))
if EARLY:
    a("s_cmp_eq_u32 s98, 0"); a("s_cselect_b32 s98, 0x%x, 0" % FLD)
    a("s_and_b32 s99, s%d, 3" % sX8); a("v_cmp_eq_u32 s[84:85], s99, v4")
    a("v_mov_b32 v198, s98"); a("v_cndmask_b32 v198, 0, v198, s[84:85]"); a("v_add_u32 v198, v205, v198")
    a("s_cmp_ge_u32 s%d, 4" % sX8); a("s_cselect_b64 vcc, -1, 0")
    a("v_cndmask_b32 v199, v205, v198, vcc"); a("v_cndmask_b32 v205, v198, v205, vcc")
    a("s_lshr_b32 s99, s%d, 2" % sX8); a("s_cmp_eq_u32 s99, s%d" % sWAVE); a("s_cselect_b32 s70, s98, 0")
    a("s_add_u32 s78, s77, 32768")
a("s_waitcnt lgkmcnt(0)")
stamp(5)
a("s_barrier")
stamp(6)
a("s_cmp_ge_u32 s%d, 28" % sR)
a("s_cbranch_scc1 KFINISH")
if opt["hlate"] == "1": small_loads("K_NOH")
issue_w("K_W2")
a("s_cmp_ge_u32 s90, 7")
a("s_cbranch_scc1 NOMLP1")
if opt["hlate"] == "1": a("s_waitcnt vmcnt(8)")
poll_check("PH", retry_h, [HG + 4 * k + 1 for k in range(4)], [HG + 4 * k + 3 for k in range(4)], sleep=SLP)
hv = [HG, HG + 2]
for x in hv:
    a("v_add_f32 v%d, v%d, v%d" % (x, x, x + 4)); a("v_add_f32 v%d, v%d, v%d" % (x + 8, x + 8, x + 12))
a("v_lshlrev_b32 v%d, 16, v%d" % (HG + 1, HB)); a("v_and_b32 v%d, 0xffff0000, v%d" % (HG + 3, HB))
for x in hv: a("v_add_f32 v%d, v%d, v%d" % (x, x, x + 8))
for x in hv: a("v_add_f32 v%d, v%d, v%d" % (x, x, x + 1))
a("s_mov_b32 s96, 0x%x" % f2u(-LOG2E))
T1, T2 = 16, 24
for k, x in enumerate(hv): a("v_mul_f32 v%d, s96, |v%d|" % (x + 1, x))
for k, x in enumerate(hv): a("v_exp_f32 v%d, v%d" % (x + 1, x + 1))
for k, x in enumerate(hv):
    a("v_cmp_lt_f32 vcc, 0, v%d" % x)
    a("v_mul_f32 v%d, v%d, v%d" % (T1 + k, x + 1, x + 1))
    a("v_cndmask_b32 v%d, 1.0, v%d, vcc" % (T2 + k, T1 + k))
    a("v_cndmask_b32_e64 v%d, v%d, 1.0, vcc" % (T1 + k, T1 + k))
    a("v_fma_f32 v%d, v%d, 2.0, v%d" % (T1 + k, x + 1, T1 + k))
    a("v_fma_f32 v%d, v%d, 2.0, v%d" % (T2 + k, T2 + k, T1 + k))
for k, x in enumerate(hv): a("v_rcp_f32 v%d, v%d" % (T2 + k, T2 + k))
for k, x in enumerate(hv): a("v_mul_f32 v%d, v%d, v%d" % (x, x, T1 + k))
for k, x in enumerate(hv): a("v_mul_f32 v%d, v%d, v%d" % (x, x, T2 + k))
AF = 80
a("v_cvt_pk_bf16_f32 v%d, v%d, v%d" % (HG, HG, HG + 2))
for k, src in enumerate((0, 2, 1, 3)): a("v_mov_b32_dpp v%d, v%d quad_perm:[%d,%d,%d,%d]%s" % (AF + k, HG, src, src, src, src, DPPM))
a("NOMLP1:")
WOF, W2F, DM, DO = 116, 132, 48, 16
def wfrags(lbl):
    for tp in range(4):
        for m in range(2): a("ds_read_b64_tr_b16 %s, v%d offset:%d" % (v2(WOF + 4 * tp + 2 * m), 12 + tp, LW + 2048 * m))
    a("s_cmp_ge_u32 s90, 7"); a("s_cbranch_scc1 %s" % lbl)
    for tp in range(4):
        for m in range(2): a("ds_read_b64_tr_b16 %s, v%d offset:%d" % (v2(W2F + 4 * tp + 2 * m), 12 + tp, LW2 + 2048 * m))
    a("s_waitcnt lgkmcnt(0)")
    for tp in range(4): a("%s %s, %s, %s, 0" % (MF, v4(DM + 4 * tp), v4(AF), v4(W2F + 4 * tp)))
    for tp in range(4): a("v_mov_b32 v%d, v%d" % (ACC + tp, DM + 4 * tp))
    a("%s:" % lbl)
if WFIRST: wfrags("NOMLP2")
a("s_barrier")
stamp(8)
issue_o()
if not WFIRST:
    a("s_waitcnt vmcnt(5)")
    stamp(7)
    wfrags("NOMLP2")
a("s_waitcnt vmcnt(0)")
OL = [(OG + 4 * k, vL16, 69, 1024 * k) for k in range(4)] + [(SG, vST, 68, 0)]
OM = [94, 96, 98, 72, 74]
if opt["omask"] == "1":
    a("PO_chk:")
    for (r, _, _, _), m in zip(OL, OM):
        a("v_cmp_ne_u32 vcc, s%d, v%d" % (sTAG, r + 1)); a("v_cmp_ne_u32 %s, s%d, v%d" % (sp(m), sTAG, r + 3)); a("s_or_b64 %s, %s, vcc" % (sp(m), sp(m)))
    a("s_or_b64 vcc, %s, %s" % (sp(OM[0]), sp(OM[1]))); a("s_or_b64 s[64:65], %s, %s" % (sp(OM[2]), sp(OM[3])))
    a("s_or_b64 vcc, vcc, %s" % sp(OM[4])); a("s_or_b64 vcc, vcc, s[64:65]")
    a("s_cbranch_scc1 PO_retry")
    a("PO_ok:")
    def issue_om():
        for k, ((r, va, so, off), m) in enumerate(zip(OL, OM)):
            a("s_mov_b64 exec, %s" % sp(m)); a("s_cbranch_execz PO_s%d" % k)
            a("buffer_load_dwordx4 %s, v%d, %s, s%d offen offset:%d sc1" % (v4(r), va, srd(SRD_WS), so, off))
            a("PO_s%d:" % k)
        a("s_mov_b64 exec, -1")
    RETRY.append(("PO", issue_om, int(opt["oslp"])))
else:
    poll_check("PO", issue_o, [OG + 4 * k + j for k in range(4) for j in (1, 3)] + [SG + 1, SG + 3], sleep=int(opt["oslp"]))
stamp(9)
RG = 208 if EARLY else 20
RV = (205, 199) if EARLY else (205, 205)
for hf in range(2):
    o = OG + 8 * hf
    a("v_pk_mov_b32 %s, %s, %s op_sel:[0,0]" % (v2(o), v2(o), v2(o + 2)))
    a("v_pk_mov_b32 %s, %s, %s op_sel:[0,0]" % (v2(o + 2), v2(o + 4), v2(o + 6)))
a("v_mov_b32 v%d, v%d" % (SG + 1, SG))
a("s_waitcnt lgkmcnt(0)")
fops = [lambda: dpp_red("v_max_f32", SG + 1, "quad_perm:[1,0,3,2]"), lambda: dpp_red("v_max_f32", SG + 1, "quad_perm:[2,3,0,1]"),
        lambda: dpp_red("v_max_f32", SG + 1, "row_half_mirror"),
        lambda: (a("v_sub_f32 v%d, v%d, v%d" % (SG, SG, SG + 1)), a("v_exp_f32 v%d, v%d" % (SG, SG))),
        lambda: a("v_mul_f32 v%d, v%d, v%d" % (SG + 2, SG + 2, SG)),
        lambda: dpp_red("v_add_f32", SG + 2, "quad_perm:[1,0,3,2]"), lambda: dpp_red("v_add_f32", SG + 2, "quad_perm:[2,3,0,1]"),
        lambda: dpp_red("v_add_f32", SG + 2, "row_half_mirror")]
k = 0
for hf in range(2):
    for tp in range(4):
        a("%s %s, %s, %s, 0" % (MF, v4(DO + 16 * hf + 4 * tp), v4(OG + 8 * hf), v4(WOF + 4 * tp)))
        fops[k](); k += 1
a("v_rcp_f32 v%d, v%d" % (SG + 2, SG + 2)); a("v_mul_f32 v%d, v%d, v%d" % (SG, SG, SG + 2))
for hf in range(2):
    for r in range(4):
        for tp in range(4):
            a("v_fmac_f32_dpp v%d, v%d, v%d row_newbcast:%d%s" % (ACC + tp, SG, DO + 16 * hf + 4 * tp + r, 4 * hf + r, DPPM))
a("ds_write_b128 v%d, %s offset:%d" % (vRW, v4(ACC), LRED))
a("s_waitcnt lgkmcnt(0)")
a("s_barrier")
for u in range(4): a("ds_read_b64 %s, v%d offset:%d" % (v2(16 + 2 * u), vRR, LRED + 1024 * u))
if EARLY:
    a("s_cmp_lg_u32 s%d, 0" % sWAVE); a("s_cbranch_scc1 K_NOE")
    for y in range(2): a("buffer_load_dwordx4 %s, v%d, %s, s%d offen%s" % (v4(RG + 4 * y), RV[y], srd(SRD_WS), 77 + y, RPOL))
    a("K_NOE:")

a("s_waitcnt lgkmcnt(0)")
a("v_add_f32 v16, v16, v18"); a("v_add_f32 v17, v17, v19"); a("v_add_f32 v20, v20, v22"); a("v_add_f32 v21, v21, v23")
a("v_add_f32 v%d, v16, v20" % PO); a("v_add_f32 v%d, v17, v21" % (PO + 2))
NC = int(opt["ncopy"]); CST = 0x800000
if EARLY:
    a("s_cmp_lt_u32 s%d, 2" % sWAVE)
    a("s_cbranch_scc1 K_LOC")
    a("buffer_store_dwordx4 %s, v%d, %s, s71 offen%s" % (v4(PO), vL16, srd(SRD_WS), RPOL))
    stamp(10)
    a("s_branch KFINISH")
    a("K_LOC:")
    a("s_cmp_eq_u32 s70, 0"); a("s_cbranch_scc1 K_NOLOC")
    a("s_add_u32 s71, s71, s70"); a("s_mov_b64 exec, s[84:85]")
    a("buffer_store_dwordx4 %s, v%d, %s, s71 offen" % (v4(PO), vL16, srd(SRD_WS)))
    a("s_mov_b64 exec, -1")
    a("K_NOLOC:")
    stamp(10)
    a("s_cmp_lg_u32 s%d, 0" % sWAVE)
    a("s_cbranch_scc1 KFINISH")
else:
    a("s_cmp_lt_u32 s%d, 2" % sWAVE)
    a("s_cbranch_scc1 KFINISH")
    a("buffer_store_dwordx4 %s, v%d, %s, s71 offen%s" % (v4(PO), vL16, srd(SRD_WS), RPOL))
    stamp(10)
    a("s_cmp_lg_u32 s%d, 2" % sWAVE)
    a("s_cbranch_scc1 KFINISH")
a("s_mov_b64 %s, %s" % (sp(SRD_O), sp(pOUT)))
a("v_lshlrev_b32 v206, 16, v206"); a("v_lshlrev_b32 v207, 16, v207")
if EARLY:
    a("s_waitcnt vmcnt(0)")
    a("s_branch PR_chk")
else:
    a("s_mov_b64 s[94:95], -1"); a("s_mov_b64 s[96:97], -1")
    a("s_add_u32 s78, s77, 32768")
    if opt["ackw"] == "1": a("s_waitcnt vmcnt(0)")
a("PR:")
for y in range(2):
    a("s_mov_b64 exec, s[%d:%d]" % (94 + 2 * y, 95 + 2 * y))
    a("s_cbranch_execz PR_s%d" % y)
    a("buffer_load_dwordx4 %s, v%d, %s, s%d offen%s" % (v4(RG + 4 * y), RV[y], srd(SRD_WS), 77 + y, RPOL))
    a("PR_s%d:" % y)
a("s_mov_b64 exec, -1")
a("s_waitcnt vmcnt(0)")
a("PR_chk:")
for y in range(2):
    a("v_cmp_ne_u32 vcc, s%d, v%d" % (sTAG, RG + 1 + 4 * y)); a("v_cmp_ne_u32 s[%d:%d], s%d, v%d" % (94 + 2 * y, 95 + 2 * y, sTAG, RG + 3 + 4 * y))
    a("s_or_b64 s[%d:%d], s[%d:%d], vcc" % (94 + 2 * y, 95 + 2 * y, 94 + 2 * y, 95 + 2 * y))
a("v_add_f32 v18, v%d, v%d" % (RG, RG + 4)); a("v_add_f32 v19, v%d, v%d" % (RG + 2, RG + 6))
a("s_or_b64 vcc, s[94:95], s[96:97]")
a("s_cbranch_scc0 PR_ok")
a("s_cmp_eq_u32 s%d, 0" % sSPIN); a("s_cbranch_scc1 PR_ok"); a("s_sub_u32 s%d, s%d, 1" % (sSPIN, sSPIN))
a("s_branch PR")
a("PR_ok:")
ROLE[0] = "R"
if STAMPS: a("s_memrealtime s[42:43]"); a("s_waitcnt lgkmcnt(0)")
stamp(12)
for x in (18, 19): dpp_red("v_add_f32", x, "row_ror:4")
for x in (18, 19): dpp_red("v_add_f32", x, "row_ror:8")
rows_allreduce("v_add_f32", (18, 19), (8, 9))
a("v_add_f32 v18, v18, v206"); a("v_add_f32 v19, v19, v207")
a("v_cvt_pk_bf16_f32 v18, v18, v19")
a("s_mov_b64 exec, 0xf")
a("buffer_store_short v18, v204, %s, s76 offen" % srd(SRD_O))
a("buffer_store_short_d16_hi v18, v204, %s, s76 offen offset:32" % srd(SRD_O))
a("s_mov_b64 exec, -1")
a("s_cmp_lg_u32 s2, 0")
a("s_cbranch_scc1 KFINISH")
a("v_mov_b32 v8, s%d" % sTAG)
a("s_mov_b64 exec, 1")
a("buffer_store_dword v8, v%d, %s, 0 offen%s" % (vZ, srd(SRD_WS), "" if opt["eplain"] == "1" else " sc1"))
a("s_mov_b64 exec, -1")
a("KFINISH:")
if STAMPS: a("s_add_u32 s%d, s%d, 4" % (sWAVE, sWAVE))
a("FINISH:")
if STAMPS == 1:
    a("s_waitcnt vmcnt(0)")
    stamp(11)
    a("s_lshl_b32 s94, s2, 3"); a("s_add_u32 s94, s94, s%d" % sWAVE); a("s_lshl_b32 s94, s94, 7"); a("s_add_u32 s94, s94, 0x%x" % STAMP_OFF)
    a("v_mov_b32 v1, 0")
    a("s_mov_b64 exec, 1")
    for i in range(12):
        a("v_mov_b32 v4, s%d" % (40 + 2 * i)); a("v_mov_b32 v5, s%d" % (41 + 2 * i))
        a("buffer_store_dwordx2 v[4:5], v1, %s, s94 offen offset:%d" % (srd(SRD_WS), 8 * i))
        a("s_nop 1")
if STAMPS == 2:
    a("s_waitcnt vmcnt(0)")
    stamp(11)
    a("s_cmp_ge_u32 s%d, 28" % sR); a("s_cbranch_scc1 EXIT")
    a("s_and_b32 s94, s%d, 3" % sWAVE); a("s_cmp_lg_u32 s94, 0"); a("s_cbranch_scc1 EXIT")
    a("s_mov_b64 %s, s[84:85]" % sp(SRD_O)); a("s_mov_b32 s%d, 256" % (SRD_O + 2))
    a("s_lshl_b32 s94, s%d, 3" % sWAVE)
    a("v_mov_b32 v1, 0")
    a("s_mov_b64 exec, 1")
    a("s_not_b32 s95, s40")
    sel0 = [None, 0, 3, 4, 7, 9, 10, 11]
    sel4 = [1, 4, 5, 6, 8, 9, 10, 11]
    for i in range(8):
        a("s_cmp_eq_u32 s%d, 0" % sWAVE)
        a("s_cselect_b32 s96, %s, s%d" % ("s95" if sel0[i] is None else "s%d" % (40 + 2 * sel0[i]), 40 + 2 * sel4[i]))
        a("v_mov_b32 v4, s96")
        a("buffer_atomic_umax v4, v1, %s, s94 offen offset:%d sc1" % (srd(SRD_O), 4 * i))
        a("s_nop 1")
if int(opt["hold"]):
    if int(opt["holdx"]) >= 0:
        a("s_cmp_lg_u32 s%d, %d" % (sX8, int(opt["holdx"]))); a("s_cbranch_scc1 EXIT")
    a("s_add_u32 s40, s40, %d" % int(opt["hold"]))
    a("HOLD:")
    a("s_sleep 2")
    a("s_memrealtime s[42:43]"); a("s_waitcnt lgkmcnt(0)")
    a("s_sub_u32 s44, s42, s40"); a("s_cmp_lt_i32 s44, 0"); a("s_cbranch_scc1 HOLD")
a("EXIT:")
a("s_endpgm")
emit_retries()
if QLOC and opt["nob"] == "2":
    a("K_COPYB:")
    copy_b()
    a("s_waitcnt vmcnt(0)")
    a("s_cmp_eq_u32 s98, 0")
    a("s_branch K_COPYB_ret")
a("V_REMOTE:")
a("s_add_u32 s95, s95, 0x%x" % (RB - RA)); a("s_add_u32 s96, s96, 0x%x" % (RB - RA))
a("s_mov_b64 exec, s[92:93]")
a("buffer_store_dwordx4 %s, v6, %s, s95 offen sc1" % (v4(STT), srd(SRD_WS)))
a("s_mov_b64 exec, -1")
a("s_nop 7")
o_epilogue()
a("buffer_store_dwordx4 %s, v7, %s, s96 offen sc1" % (v4(OO), srd(SRD_WS)))
a("s_branch V_PUB")
lines = hazard.fix(a.lines)
body = "\n".join(lines) + "\n"
body += ".fill 2600, 4, 0xbf810000\n"
open(sys.argv[1], "w").write(wrap(body, 256, 512, LDS_BYTES, vgpr=216))
```

```python
import sys, math, struct
from asmlib import *
import hazard
opt = dict(stamps="0", pol="nt", local="1", spin="1000000", n1="6", b1wait="63", wfirst="0", warm="0", slp="1", rpol="sc1", rpipe="0", rslp="1", b2b="0", hold="0", holdx="-1", holdat="", ncopy="1", ackw="1", rstep="1", nv1="2", oslp="0", hlate="1", omask="1", lightpf="1", compact="1", touch="1", qloc="1", grot="1", nob="2", qwarm="0", cnt="0", early="0", eplain="1", rdel="0", rsl2="0", qpack="1", b2early="0", w1pol="same")
for x in sys.argv[2:]:
    k, v = x.split("="); opt[k] = v
POL = {"nt": " nt", "none": "", "sc1nt": " sc1 nt"}[opt["pol"]]
RPOL = {"sc1": " sc1", "sys": " sc0 sc1"}[opt["rpol"]]
STAMPS = int(opt["stamps"]); SPIN = int(opt["spin"]); N1 = int(opt["n1"]); WFIRST = int(opt["wfirst"]); SLP = int(opt["slp"])

RSTEP = int(opt["rstep"])
QP, HP, RA, RB, STO, FP = 0x10000, 0x90000, 0x100000, 0x200000, 0x80000, 0x300000
if opt["compact"] == "1": QP, HP, RA, RB, STO, FP = 0x8000, 0x88000, 0xD0000, 0x200000, 0x80000, 0x160000
DB = 0x400000
QLOC = opt["qloc"] == "1"
EARLY = opt["early"] == "1"
QPACK = opt["qpack"] == "1"
QSH = 10 if QPACK else 11
FLD = 0x200000
LT0, LT1, LW, LW2, LQ, LS, LRED, LFLAG = 0, 14336, 28672, 45056, 53248, 54272, 55296, 59392
LDS_BYTES = 98304
sWAVE, sX8, sR, sB, sS, sTAG, sSPIN, sXCC, sTGX = 3, 28, 29, 30, 31, 32, 33, 34, 35
SRD_X, SRD_KV, SRD_T, SRD_W2, SRD_WS, SRD_O = 4, 8, 12, 16, 20, 24
pX, pK, pV, pWQ, pWO, pW1, pB1, pW2, pOUT, pWS = 64, 66, 68, 70, 72, 76, 78, 80, 82, 86
sM1, sM2, sM3 = 88, 90, 92
LOG2E = 1.4426950408889634
def f2u(f): return struct.unpack("<I", struct.pack("<f", f))[0]
def srd(n): return "s[%d:%d]" % (n, n + 3)
def sp(n): return "s[%d:%d]" % (n, n + 1)
def v4(n): return "v[%d:%d]" % (n, n + 3)
def v2(n): return "v[%d:%d]" % (n, n + 1)
DPPM = " row_mask:0xf bank_mask:0xf"
MF = "v_mfma_f32_16x16x32_bf16"

a = Asm()
ROLE = ["V"]
def stamp(i):
    if opt["holdat"] == "%s%d" % (ROLE[0], i):
        a("s_memrealtime s[40:41]"); a("s_waitcnt lgkmcnt(0)")
    if STAMPS and i < 12:
        a("s_memrealtime s[%d:%d]" % (40 + 2 * i, 41 + 2 * i)); a("s_waitcnt lgkmcnt(0)")
def rows_allreduce(op, xs, ts):
    for sw in ("v_permlane16_swap_b32", "v_permlane32_swap_b32"):
        for x, t in zip(xs, ts): a("v_mov_b32 v%d, v%d" % (t, x))
        for x, t in zip(xs, ts): a("%s v%d, v%d" % (sw, x, t))
        for x, t in zip(xs, ts): a("%s v%d, v%d, v%d" % (op, x, x, t))
def dpp_red(op, x, ctrl): a("%s_dpp v%d, v%d, v%d %s%s" % (op, x, x, x, ctrl, DPPM))
def bf16_round(x):
    a("v_cvt_pk_bf16_f32 v%d, v%d, v%d" % (x, x, x)); a("v_lshlrev_b32 v%d, 16, v%d" % (x, x))
def check_tags(eq, xo=()):
    for t in eq: a("v_cmpx_eq_u32 vcc, s%d, v%d" % (sTAG, t))
    for t in xo:
        a("v_xor_b32 v%d, s%d, v%d" % (t, sTAG, t)); a("v_cmpx_gt_u32 vcc, 16, v%d" % t)
    a("s_cmp_eq_u64 exec, -1")
    a("s_mov_b64 exec, -1")
RETRY = []
def poll_check(name, issue, eq, xo=(), sleep=None):
    a("%s_chk:" % name)
    check_tags(eq, xo)
    a("s_cbranch_scc0 %s_retry" % name)
    a("%s_ok:" % name)
    a("s_nop 2")
    RETRY.append((name, issue, sleep))
def emit_retries():
    for name, issue, sleep in RETRY:
        a("%s_retry:" % name)
        a("s_cmp_eq_u32 s%d, 0" % sSPIN)
        a("s_cbranch_scc1 %s_ok" % name)
        a("s_sub_u32 s%d, s%d, 1" % (sSPIN, sSPIN))
        if sleep: a("s_sleep %d" % sleep)
        issue()
        a("s_waitcnt vmcnt(0)")
        a("s_branch %s_chk" % name)
def make_tag():
    a("s_waitcnt lgkmcnt(0)")
    a("s_mul_i32 s%d, s%d, 1664525" % (sTAG, sTAG)); a("s_add_u32 s%d, s%d, 1013904223" % (sTAG, sTAG))
def tr_addrs():
    a("v_lshrrev_b32 v12, 2, v0"); a("v_lshlrev_b32 v12, 7, v12"); a("v_lshl_add_u32 v12, v5, 3, v12")
    a("v_and_b32 v13, 3, v11"); a("v_lshl_add_u32 v12, v13, 5, v12")
    for tp in range(1, 4): a("v_xor_b32 v%d, %d, v12" % (12 + tp, 32 * tp))

a("s_cmp_ge_u32 s2, 256")
a("s_cbranch_scc1 EXIT")
if STAMPS or int(opt["hold"]): a("s_memrealtime s[40:41]")
a("s_load_dwordx16 s[64:79], s[0:1], 0")
a("s_load_dwordx8 s[80:87], s[0:1], 64")
a("s_getpc_b64 s[36:37]")
if opt["lightpf"] == "1":
    a("v_lshrrev_b32 v1, 6, v0")
    a("s_lshr_b32 s38, s2, 3"); a("s_mul_i32 s39, s38, 26"); a("s_lshr_b32 s39, s39, 8"); a("s_mul_i32 s39, s39, 10"); a("s_sub_u32 s38, s38, s39"); a("s_lshl_b32 s38, s38, 10")
    a("v_lshl_add_u32 v2, v1, 7, s38")
    a("global_load_dword v215, v2, s[36:37]")
else:
    a("v_mul_u32_u24 v1, 20, v0")
    a("global_load_dword v215, v1, s[36:37]")
    a("v_lshrrev_b32 v1, 6, v0")
a("v_and_b32 v0, 63, v0")
a("v_readfirstlane_b32 s%d, v1" % sWAVE)
a("s_and_b32 s%d, s2, 7" % sX8)
a("s_lshr_b32 s%d, s2, 3" % sR)
a("s_lshr_b32 s%d, s2, 6" % sB)
a("s_bfe_u32 s%d, s2, 0x30003" % sS)
a("s_getreg_b32 s%d, hwreg(HW_REG_XCC_ID, 0, 4)" % sXCC)
a("s_mov_b32 s%d, %d" % (sSPIN, SPIN))
for n, size in ((SRD_X, 3584), (SRD_KV, 1 << 26), (SRD_T, 448 * 8192), (SRD_W2, 1792 * 896), (SRD_WS, 1 << 28), (SRD_O, 3584)):
    a("s_mov_b32 s%d, 0x%x" % (n + 2, size)); a("s_mov_b32 s%d, 0x20000" % (n + 3))
a("s_lshl_b32 s36, s%d, 3" % sB); a("s_add_u32 s36, s36, s%d" % sX8); a("s_lshl_b32 s36, s36, 21")
a("s_lshl_b32 s38, s%d, 12" % sS)
GROT = opt["grot"]
if GROT == "1":
    a("s_lshl_b32 s93, s%d, 1" % sX8); a("s_mul_i32 s37, s%d, 5" % sB); a("s_add_u32 s93, s93, s37"); a("s_lshl_b32 s93, s93, 15"); a("s_and_b32 s93, s93, 0x78000")
elif GROT == "2":
    a("s_lshl_b32 s93, s%d, 2" % sB); a("s_add_u32 s93, s93, s%d" % sX8); a("s_lshl_b32 s93, s93, 15"); a("s_and_b32 s93, s93, 0x78000")
else: a("s_mov_b32 s93, 0")
a("s_add_u32 s36, s36, %d" % (3072 * 512))
a("v_lshrrev_b32 v4, 4, v0"); a("v_and_b32 v5, 3, v0"); a("v_bfe_u32 v3, v0, 2, 2"); a("v_lshrrev_b32 v11, 3, v0")
a("v_lshlrev_b32 v10, 1, v4"); a("v_xor_b32 v10, v10, v0"); a("v_and_b32 v10, 7, v10"); a("v_lshlrev_b32 v10, 4, v10")
a("s_lshl_b32 s39, s%d, 5" % sX8); a("s_add_u32 s39, s39, s%d" % sR)
a("s_mov_b32 s101, s93")
a("s_cmp_lg_u32 s%d, 0" % sWAVE)
a("s_cbranch_scc1 NOTW0")
XS, XF = 84, 100
a("s_setprio 3")
a("s_mul_i32 s98, s%d, %d" % (sB, 112 * 8192)); a("s_lshl_b32 s97, s%d, 10" % sX8); a("s_add_u32 s98, s98, s97")
a("s_lshl_b32 s97, s%d, 7" % sS); a("s_add_u32 s98, s98, s97")
a("s_mul_i32 s99, s%d, %d" % (sB, 112 * 3584)); a("s_mul_i32 s97, s%d, 448" % sX8); a("s_add_u32 s99, s99, s97")
a("s_lshl_b32 s97, s%d, 6" % sS); a("s_add_u32 s99, s99, s97")
a("s_cmp_eq_u32 s%d, 7" % sS); a("s_cselect_b32 s99, 0x40000000, s99")
a("v_mul_u32_u24 v6, 896, v3"); a("v_lshl_add_u32 v7, v4, 2, v5")
a("v_lshl_add_u32 v8, v4, 3, v6"); a("v_lshl_add_u32 v1, v7, 3, v6"); a("v_lshl_add_u32 v6, v7, 4, v6")
a("v_lshl_add_u32 v9, v11, 13, v10")
a("v_lshrrev_b32 v2, 2, v0"); a("v_mul_u32_u24 v2, 3584, v2"); a("v_and_b32 v7, 48, v10"); a("v_add_u32 v2, v2, v7")
a("s_mul_i32 s37, s%d, 224" % sB)
a("s_mov_b32 m0, %d" % LT0)
for r in range(20, 24): a("v_mov_b32 v%d, -1" % r)
a("v_lshlrev_b32 v24, 4, v0"); a("s_lshl_b32 s96, s39, 10"); a("s_add_u32 s96, s96, 0x%x" % RA)
a("v_mov_b32 v16, 0"); a("v_mov_b32 v17, 0")
a("ds_write_b64 v16, v[16:17] offset:%d" % LFLAG); a("ds_write_b64 v16, v[16:17] offset:%d" % (LFLAG + 8))
if STAMPS: a("s_memrealtime s[60:61]")
a("s_waitcnt lgkmcnt(0)")
if STAMPS: a("s_memrealtime s[54:55]")
a("s_mov_b64 %s, %s" % (sp(SRD_T), sp(pWQ)))
a("s_mov_b64 %s, %s" % (sp(SRD_X), sp(pX)))
a("s_mov_b64 %s, %s" % (sp(SRD_W2), sp(pW1)))
a("s_mov_b64 %s, %s" % (sp(SRD_WS), sp(pWS)))
for t in range(14):
    a("buffer_load_dwordx4 v9, %s, s98 offen%s lds" % (srd(SRD_T), POL))
    if t == 1:
        a("buffer_store_dwordx4 v[20:23], v24, %s, s96 offen" % srd(SRD_WS))
        for i in range(3): a("buffer_load_dwordx4 %s, v6, %s, 0 offen offset:%d" % (v4(XS + 4 * i), srd(SRD_X), 256 * i))
        a("buffer_load_dwordx2 %s, v1, %s, 0 offen offset:768" % (v2(XS + 12), srd(SRD_X)))
        for m in range(7): a("buffer_load_dwordx2 %s, v8, %s, s37 offen offset:%d" % (v2(XF + 2 * m), srd(SRD_X), 32 * m))
    a("s_add_u32 m0, m0, 1024")
    if t < 13: a("s_add_u32 s98, s98, %d" % (8 * 8192))
for t in range(7):
    a("buffer_load_dwordx4 v2, %s, s99 offen%s lds" % (srd(SRD_W2), POL if opt["w1pol"] == "same" else ""))
    if t < 6: a("s_add_u32 m0, m0, 1024"); a("s_add_u32 s99, s99, %d" % (16 * 3584))
a("s_load_dword s%d, %s, 0" % (sTAG, sp(pWS)))
a("s_mov_b64 %s, %s" % (sp(SRD_KV), sp(pV)))
a("s_branch V_PROJ")

a("NOTW0:")
a("s_cmp_ge_u32 s%d, 4" % sWAVE)
a("s_waitcnt lgkmcnt(0)")
a("s_load_dword s%d, %s, 0" % (sTAG, sp(pWS)))
a("s_mov_b64 %s, %s" % (sp(SRD_WS), sp(pWS)))
a("s_cselect_b64 %s, %s, %s" % (sp(SRD_KV), sp(pK), sp(pV)))
a("s_cbranch_scc1 KWAVE")
if opt["warm"] == "1":
    a("s_lshl_b32 s94, s39, 11"); a("s_lshl_b32 s95, s%d, 10" % sWAVE); a("s_add_u32 s94, s94, s95"); a("s_add_u32 s94, s94, 0x%x" % (RA - 1024))
    a("s_lshl_b32 s95, s%d, 10" % sX8); a("s_add_u32 s95, s95, 0x%x" % (RA + STO))
    a("s_cmp_eq_u32 s%d, 3" % sWAVE); a("s_cselect_b32 s94, s95, s94")
    a("v_lshlrev_b32 v1, 4, v0")
if opt["qwarm"] != "0":
    a("s_lshl_b32 s94, s39, 11"); a("s_lshl_b32 s95, s%d, 10" % sWAVE); a("s_add_u32 s94, s94, s95"); a("s_add_u32 s94, s94, 0x%x" % (QP - 1024))
    a("s_lshl_b32 s95, s39, 10"); a("s_add_u32 s95, s95, 0x%x" % HP)
    a("s_cmp_eq_u32 s%d, 3" % sWAVE); a("s_cselect_b32 s94, s95, s94")
    a("v_lshlrev_b32 v1, 4, v0")
    if opt["qwarm"] == "1": a("buffer_load_dwordx4 v[212:215], v1, %s, s94 offen sc1" % srd(SRD_WS))
a("s_barrier")
if opt["qwarm"] == "2": a("buffer_load_dwordx4 v[212:215], v1, %s, s94 offen sc1" % srd(SRD_WS))
if opt["warm"] == "1":
    a("buffer_load_dwordx4 v[212:215], v1, %s, s94 offen sc1" % srd(SRD_WS))
make_tag()
a("s_branch V_B2")

a("KWAVE:")
ROLE[0] = "K"
KR = 16
a("s_sub_u32 s%d, s%d, 4" % (sWAVE, sWAVE))
a("s_setprio 2")
a("v_lshlrev_b32 v1, 9, v3"); a("v_lshl_add_u32 v1, v4, 6, v1"); a("v_lshl_add_u32 v1, v5, 4, v1")
a("s_lshr_b32 s37, s%d, 1" % sWAVE); a("s_lshl_b32 s94, s37, 14"); a("s_xor_b32 s38, s38, s94"); a("s_lshl_b32 s37, s37, 18"); a("s_xor_b32 s93, s93, s37")
a("s_and_b32 s37, s%d, 1" % sWAVE); a("s_lshl_b32 s37, s37, 11"); a("s_add_u32 s36, s36, s37")
a("s_barrier")
def kload(i):
    if not i & 1: a("s_or_b32 s37, s93, s38"); a("s_add_u32 s37, s36, s37")
    a("buffer_load_dwordx4 %s, v1, %s, s37 offen offset:%d%s" % (v4(KR + 4 * i), srd(SRD_KV), (i & 1) * 256, POL))
    if i & 1 and i < 15:
        a("s_add_u32 s93, s93, 32768"); a("s_and_b32 s93, s93, 0x78000"); a("s_add_u32 s38, s38, %d" % (4096 * RSTEP)); a("s_and_b32 s38, s38, 0x7000")
for i in range(N1): kload(i)
stamp(1)
a("s_branch K_MAIN")

a("V_PROJ:")
ROLE[0] = "V"
tr_addrs()
a("s_mov_b32 s37, 0x3f803f80")
a("v_mov_b32 v6, 0"); a("v_mov_b32 v7, 0")
WF, DT, PB = 116, 180, 196
for r in [XF + 14, XF + 15] + [WF + 16 * tp + k for tp in range(4) for k in (14, 15)]: a("v_mov_b32 v%d, 0" % r)
for nn, val in ((sM1, 0x22222222), (sM2, 0x44444444), (sM3, 0x88888888)):
    a("s_mov_b32 s%d, 0x%x" % (nn, val)); a("s_mov_b32 s%d, 0x%x" % (nn + 1, val))
a("v_lshlrev_b32 v2, 6, v4"); a("v_lshl_add_u32 v2, v5, 4, v2")
a("v_lshl_add_u32 v1, v3, 9, v2")
a("v_lshl_add_u32 v2, v3, 8, v2")
a("v_lshrrev_b32 v80, 2, v0"); a("v_lshlrev_b32 v80, 6, v80"); a("v_lshl_add_u32 v80, v5, 3, v80")
a("v_and_b32 v81, 1, v4"); a("v_lshl_add_u32 v80, v81, 5, v80"); a("v_xor_b32 v81, 32, v80")
a("s_lshl_b32 s98, s39, %d" % QSH); a("s_add_u32 s98, s98, 0x%x" % QP)
def h_unit(dst, tmp):
    a("s_lshl_b32 s%d, s%d, 1" % (dst, sX8)); a("s_lshr_b32 s%d, s%d, 1" % (tmp, sB)); a("s_add_u32 s%d, s%d, s%d" % (dst, dst, tmp))
    a("s_lshl_b32 s%d, s%d, 3" % (dst, dst)); a("s_add_u32 s%d, s%d, s%d" % (dst, dst, sS)); a("s_lshl_b32 s%d, s%d, 10" % (dst, dst)); a("s_add_u32 s%d, s%d, 0x%x" % (dst, dst, HP))
h_unit(99, 94)
a("s_and_b32 s94, s%d, 1" % sB); a("s_lshl_b32 s94, s94, 5"); a("s_add_u32 s99, s99, s94")
if QPACK:
    for k in range(4): a("s_mov_b32 s%d, 0x%x" % (94 + k, 0x07060500 + k))
if int(opt["b1wait"]) < 63: a("s_waitcnt vmcnt(%d)" % int(opt["b1wait"]))
a("s_barrier")
stamp(1)
a("s_waitcnt vmcnt(26)")
for i in range(14):
    a("v_dot2c_f32_bf16 v6, s37, v%d" % (XS + i)); a("v_dot2c_f32_bf16 v7, v%d, v%d" % (XS + i, XS + i))
for x in (6, 7): dpp_red("v_add_f32", x, "quad_perm:[1,0,3,2]")
for x in (6, 7): dpp_red("v_add_f32", x, "quad_perm:[2,3,0,1]")
rows_allreduce("v_add_f32", (6, 7), (8, 9))
a("v_mul_f32 v6, 0x%x, v6" % f2u(1.0 / 448)); a("v_mul_f32 v7, 0x%x, v7" % f2u(1.0 / 448))
a("v_fma_f32 v7, -v6, v6, v7"); a("v_max_f32 v7, 0, v7")
bf16_round(7); a("v_add_f32 v7, 0x%x, v7" % f2u(1e-5)); bf16_round(7)
a("v_sqrt_f32 v7, v7"); bf16_round(6); bf16_round(7); a("v_rcp_f32 v7, v7")
a("s_waitcnt vmcnt(19)")
a("v_mul_f32 v6, v6, v7")
for i in range(14):
    r = XF + i; t = XS + 2 * (i & 1)
    a("v_lshlrev_b32 v%d, 16, v%d" % (t, r)); a("v_and_b32 v%d, 0xffff0000, v%d" % (t + 1, r))
    a("v_fma_f32 v%d, v%d, v7, -v6" % (t, t)); a("v_fma_f32 v%d, v%d, v7, -v6" % (t + 1, t + 1))
    a("v_cvt_pk_bf16_f32 v%d, v%d, v%d" % (r, t, t + 1))
make_tag()
a("s_xor_b32 s%d, s%d, s%d" % (sTGX, sTAG, sXCC))
a("v_mov_b32 v%d, s%d" % (PB + 3, sTGX))
stamp(2)
a("s_waitcnt vmcnt(7)")
stamp(3)
def proj_mfma(q, d):
    for u in range(4): a("%s %s, %s, %s, %s" % (MF, v4(d), v4(WF + 16 * q + 4 * u), v4(XF + 4 * u), "0" if u == 0 else v4(d)))
for tp in range(4):
    for m in range(7): a("ds_read_b64_tr_b16 %s, v%d offset:%d" % (v2(WF + 16 * tp + 2 * m), 12 + tp, LT0 + 2048 * m))
    if tp >= 1:
        a("s_waitcnt lgkmcnt(7)"); proj_mfma(tp - 1, DT + 4 * (tp - 1))
a("s_waitcnt lgkmcnt(0)")
proj_mfma(3, DT + 12)
QS = "" if QLOC else " sc1"
pq = (lambda r: XS + r) if QPACK else (lambda r: PB + 2 * r)
for r in range(4): a("v_cndmask_b32 v%d, v%d, v%d, %s" % (pq(r), DT + r, DT + 4 + r, sp(sM1)))
for r in range(4): a("v_cndmask_b32 v%d, v%d, v%d, %s" % (pq(r), pq(r), DT + 8 + r, sp(sM2)))
for r in range(4): a("v_cndmask_b32 v%d, v%d, v%d, %s" % (pq(r), pq(r), DT + 12 + r, sp(sM3)))
if QPACK:
    for r in range(4): a("v_perm_b32 v%d, v%d, v%d, s%d" % (XS + r, XS + r, PB + 3, 94 + r))
    a("buffer_store_dwordx4 %s, v2, %s, s98 offen%s" % (v4(XS), srd(SRD_WS), QS))
    if opt["b2early"] == "1":
        a("s_barrier")
        if int(opt["nv1"]): a("s_barrier")
    a("s_waitcnt vmcnt(1)")
else:
    a("buffer_store_dwordx4 %s, v1, %s, s98 offen%s" % (v4(PB), srd(SRD_WS), QS))
    a("buffer_store_dwordx4 %s, v1, %s, s98 offen offset:256%s" % (v4(PB + 4), srd(SRD_WS), QS))
    a("s_waitcnt vmcnt(2)")
for tp in range(2):
    for m in range(7): a("ds_read_b64_tr_b16 %s, v%d offset:%d" % (v2(WF + 16 * tp + 2 * m), 80 + tp, LT1 + 1024 * m))
a("s_waitcnt lgkmcnt(7)"); proj_mfma(0, DT)
a("s_waitcnt lgkmcnt(0)"); proj_mfma(1, DT + 4)
for r in range(4): a("v_cndmask_b32 v%d, v%d, v%d, %s" % (XS + 4 + r, DT + r, DT + 4 + r, sp(sM1)))
for r in range(4): a("v_perm_b32 v%d, v%d, v%d, s%d" % (XS + 4 + r, XS + 4 + r, PB + 3, 94 + r))
a("s_mov_b32 exec_lo, 0x33333333"); a("s_mov_b32 exec_hi, 0x33333333")
a("buffer_store_dwordx4 %s, v2, %s, s99 offen%s" % (v4(XS + 4), srd(SRD_WS), QS))
a("s_mov_b64 exec, -1")
if QLOC and opt["nob"] == "0":
    a("s_add_u32 s98, s98, 0x%x" % DB); a("s_add_u32 s99, s99, 0x%x" % DB)
    a("buffer_store_dwordx4 %s, v1, %s, s98 offen sc1" % (v4(PB), srd(SRD_WS)))
    a("buffer_store_dwordx4 %s, v1, %s, s98 offen offset:256 sc1" % (v4(PB + 4), srd(SRD_WS)))
    a("buffer_store_dwordx4 %s, v2, %s, s99 offen sc1" % (v4(PB + 8), srd(SRD_WS)))
a("s_setprio 0")
if opt["b2early"] == "1": stamp(4); a("s_branch V_B2X")
a("V_B2:")
stamp(4)
a("s_barrier")
a("V_B2X:")
VR, VF, DV = 16, 80, 144
a("v_lshlrev_b32 v1, 9, v11"); a("v_and_b32 v6, 7, v0"); a("v_lshl_add_u32 v1, v6, 4, v1")
a("s_lshl_b32 s37, s%d, 7" % sWAVE); a("s_add_u32 s36, s36, s37")
a("s_mov_b32 s98, 0x05040100"); a("s_mov_b32 s99, 0x07060302")
a("v_bfe_u32 v6, v0, 2, 1"); a("v_lshlrev_b32 v8, 9, v6"); a("v_lshl_add_u32 v8, v4, 6, v8")
a("v_and_b32 v7, 1, v0"); a("v_lshl_add_u32 v8, v7, 5, v8"); a("v_lshlrev_b32 v6, 9, v6")
SS, PFR, STT, TT, OO = 176, 192, 200, 204, 208
a("s_lshl_b32 s95, s%d, 10" % sX8); a("s_lshl_b32 s96, s%d, 4" % sR); a("s_add_u32 s95, s95, s96"); a("s_add_u32 s95, s95, 0x%x" % (RA + STO))
a("s_lshl_b32 s96, s%d, 15" % sX8); a("s_lshl_b32 s97, s%d, 12" % sWAVE); a("s_add_u32 s96, s96, s97")
a("s_lshr_b32 s97, s%d, 2" % sS); a("s_lshl_b32 s97, s97, 10"); a("s_add_u32 s96, s96, s97")
a("s_lshl_b32 s97, s%d, 2" % sB); a("s_and_b32 s94, s%d, 3" % sS); a("s_add_u32 s97, s97, s94"); a("s_lshl_b32 s97, s97, 4")
a("s_add_u32 s94, s96, s97"); a("s_add_u32 s94, s94, 0x%x" % RA)
a("v_bfe_u32 v9, v0, 4, 1"); a("v_lshlrev_b32 v10, 14, v9"); a("v_bfe_u32 v7, v0, 2, 1"); a("v_lshl_add_u32 v10, v7, 11, v10")
a("v_lshl_add_u32 v7, v5, 8, v10")
a("v_mov_b32 v2, 0")
a("s_mov_b32 s100, 0x%x" % f2u(LOG2E / 16))
if opt["b2b"] == "1": a("s_barrier")
stamp(5)
for i in range(16):
    if int(opt["nv1"]) and i == int(opt["nv1"]):
        if opt["b2early"] == "1": a("s_cmp_eq_u32 s%d, 0" % sWAVE); a("s_cbranch_scc1 V_NOB2C")
        a("s_barrier")
        a("V_NOB2C:")
    a("s_or_b32 s37, s101, s38"); a("s_add_u32 s37, s36, s37")
    a("buffer_load_dwordx4 %s, v1, %s, s37 offen%s" % (v4(VR + 4 * i), srd(SRD_KV), POL))
    if i < 15:
        a("s_add_u32 s101, s101, 32768"); a("s_and_b32 s101, s101, 0x78000"); a("s_add_u32 s38, s38, %d" % (4096 * (RSTEP + (4 if i == 7 else 0)))); a("s_and_b32 s38, s38, 0x7000")
for r in (STT + 1, STT + 3): a("v_mov_b32 v%d, s%d" % (r, sTAG))
a("s_bitcmp1_b32 s%d, 0" % sWAVE); a("s_cselect_b32 s92, 16, 1"); a("s_mov_b32 s93, 0")
stamp(6)
a("s_barrier")
if opt.get("pro", "0") != "1": stamp(7)
def vperm(pair):
    G, i = pair >> 2, pair & 3
    for m in range(4):
        A = VR + 4 * (2 * pair) + m; B = A + 4
        a("v_perm_b32 v%d, v%d, v%d, s98" % (VF + 32 * G + 4 * (2 * m) + i, B, A))
        a("v_perm_b32 v%d, v%d, v%d, s99" % (VF + 32 * G + 4 * (2 * m + 1) + i, B, A))
for k, off in enumerate((0, 16, 256, 272)): a("ds_read_b128 %s, v8 offset:%d" % (v4(SS + 4 * k), LS + off))
a("ds_read_b128 %s, v2 offset:%d" % (v4(TT), LFLAG))
a("s_waitcnt lgkmcnt(0)")
a("v_min3_u32 v2, v%d, v%d, v%d" % (TT, TT + 1, TT + 2)); a("v_min_u32 v2, v2, v%d" % (TT + 3))
a("v_readfirstlane_b32 s101, v2")
a("v_max3_f32 v8, v%d, v%d, v%d" % (SS, SS + 1, SS + 2)); a("v_max3_f32 v9, v%d, v%d, v%d" % (SS + 3, SS + 4, SS + 5))
a("v_max3_f32 v8, v8, v%d, v%d" % (SS + 6, SS + 7)); a("v_max3_f32 v9, v9, v%d, v%d" % (SS + 8, SS + 9))
a("v_max3_f32 v8, v8, v%d, v%d" % (SS + 10, SS + 11)); a("v_max3_f32 v9, v9, v%d, v%d" % (SS + 12, SS + 13))
a("v_max3_f32 v8, v8, v%d, v%d" % (SS + 14, SS + 15)); a("v_max_f32 v8, v8, v9")
dpp_red("v_max_f32", 8, "quad_perm:[1,0,3,2]")
rows_allreduce("v_max_f32", (8,), (9,))
a("v_mul_f32 v%d, s100, v8" % STT)
for k in range(16): a("v_fma_f32 v%d, v%d, s100, -v%d" % (SS + k, SS + k, STT))
for k in range(16): a("v_exp_f32 v%d, v%d" % (SS + k, SS + k))
for k in range(8): a("v_cvt_pk_bf16_f32 v%d, v%d, v%d" % (PFR + k, SS + 2 * k, SS + 2 * k + 1))
for k in range(8): a("v_add_f32 v%d, v%d, v%d" % (SS + k, SS + k, SS + 8 + k))
for k in range(4): a("v_add_f32 v%d, v%d, v%d" % (SS + k, SS + k, SS + 4 + k))
a("v_add_f32 v%d, v%d, v%d" % (SS, SS, SS + 2)); a("v_add_f32 v%d, v%d, v%d" % (SS + 1, SS + 1, SS + 3))
a("v_add_f32 v%d, v%d, v%d" % (STT + 2, SS, SS + 1))
dpp_red("v_add_f32", STT + 2, "quad_perm:[1,0,3,2]")
rows_allreduce("v_add_f32", (STT + 2,), (9,))
def pv_mfma(G):
    for j in range(8): a("%s %s, %s, %s, %s" % (MF, v4(DV + 4 * j), v4(PFR + 4 * G), v4(VF + 32 * G + 4 * j), "0" if G == 0 else v4(DV + 4 * j)))
for p in range(8):
    a("s_waitcnt vmcnt(%d)" % (16 - 2 * (p + 1))); vperm(p)
    if p == 3: pv_mfma(0)
stamp(8)
pv_mfma(1)
a("s_cmp_eq_u32 s101, %d" % (2 if opt["local"] == "1" else 3))
a("s_cbranch_scc0 V_REMOTE")
a("s_mov_b64 exec, s[92:93]")
a("buffer_store_dwordx4 %s, v6, %s, s95 offen" % (v4(STT), srd(SRD_WS)))
a("s_mov_b64 exec, -1")
def o_epilogue():
    for j in range(4): a("v_add_f32_dpp v%d, v%d, v%d row_ror:8 row_mask:0xf bank_mask:0x3" % (TT + j, DV + 4 * j + 1, DV + 4 * j))
    for j in range(4, 8): a("v_add_f32_dpp v%d, v%d, v%d row_ror:8 row_mask:0xf bank_mask:0xc" % (TT + j - 4, DV + 4 * j, DV + 4 * j + 1))
    a("v_cvt_pk_bf16_f32 v%d, v%d, v%d" % (OO, TT, TT + 1)); a("v_cvt_pk_bf16_f32 v%d, v%d, v%d" % (OO + 2, TT + 2, TT + 3))
    a("s_mov_b32 exec_hi, 0")
for j in range(8): a("v_add_f32_dpp v%d, v%d, v%d row_ror:8%s" % (SS + j, DV + 4 * j + 1, DV + 4 * j, DPPM))
for k in range(4): a("v_cvt_pk_bf16_f32 v%d, v%d, v%d" % (OO + k, SS + 2 * k, SS + 2 * k + 1))
a("s_mov_b64 exec, 0x00ff00ff")
a("buffer_store_dwordx4 %s, v7, %s, s94 offen" % (v4(OO), srd(SRD_WS)))
a("V_PUB:")
a("s_mov_b64 exec, -1")
stamp(9)
a("s_cmp_ge_u32 s%d, 28" % sR)
a("s_cbranch_scc1 FINISH")
a("s_barrier")
a("s_barrier")
a("s_branch FINISH")

a("K_MAIN:")
ROLE[0] = "K"
a("s_and_b32 s88, s%d, 3" % sR); a("s_lshr_b32 s89, s%d, 2" % sR)
a("s_mov_b64 %s, %s" % (sp(SRD_T), sp(pWO))); a("s_mov_b64 %s, %s" % (sp(SRD_W2), sp(pW2))); a("s_mov_b64 %s, %s" % (sp(SRD_O), sp(pB1)))
a("s_mov_b64 %s, %s" % (sp(SRD_X), sp(pX)))
a("s_lshl_b32 s92, s%d, 12" % sWAVE)
a("s_lshl_b32 s90, s%d, 2" % sWAVE); a("s_add_u32 s90, s90, s88")
a("s_mul_i32 s91, s%d, 7" % sX8); a("s_add_u32 s91, s91, s90")
a("s_cmp_ge_u32 s%d, 28" % sR); a("s_cselect_b32 s90, 7, s90")
a("s_lshl_b32 s64, s%d, 4" % sX8); a("s_lshl_b32 s97, s88, 2"); a("s_add_u32 s64, s64, s97"); a("s_add_u32 s64, s64, s%d" % sWAVE)
a("s_mul_i32 s64, s64, %d" % (32 * 896)); a("s_lshl_b32 s97, s89, 7"); a("s_add_u32 s64, s64, s97")
a("s_mul_i32 s65, s91, %d" % (32 * 896)); a("s_add_u32 s65, s65, s97")
a("s_lshl_b32 s94, s%d, 16" % sX8); a("s_add_u32 s94, s94, s92")
a("s_lshl_b32 s95, s%d, 9" % sB); a("s_add_u32 s94, s94, s95")
if QPACK: a("s_lshr_b32 s94, s94, 1")
a("s_add_u32 s94, s94, 0x%x" % QP)
for k in range(1, 4): a("s_add_u32 s%d, s94, %d" % (94 + k, 16384 * k))
a("s_lshl_b32 s66, s%d, 4" % sX8); a("s_add_u32 s66, s66, s90"); a("s_lshl_b32 s66, s66, 10"); a("s_add_u32 s66, s66, 0x%x" % HP)
a("s_lshl_b32 s67, s91, 6")
a("s_lshl_b32 s68, s%d, 1" % sX8); a("s_lshr_b32 s99, s88, 1"); a("s_add_u32 s68, s68, s99"); a("s_lshl_b32 s68, s68, 9"); a("s_add_u32 s68, s68, 0x%x" % (RA + STO))
a("s_lshl_b32 s69, s%d, 16" % sX8); a("s_lshl_b32 s99, s88, 14"); a("s_add_u32 s69, s69, s99"); a("s_add_u32 s69, s69, s92")
a("s_lshr_b32 s70, s69, 1"); a("s_add_u32 s70, s70, 0x%x" % RA); a("s_add_u32 s69, s69, 0x%x" % RB)
a("s_add_u32 s73, s66, 8192")
a("s_lshl_b32 s71, s89, 5"); a("s_lshl_b32 s99, s%d, 2" % sX8); a("s_add_u32 s71, s71, s99"); a("s_add_u32 s71, s71, s88")
a("s_and_b32 s100, s%d, 1" % sWAVE)
a("s_lshl_b32 s71, s71, 1"); a("s_add_u32 s71, s71, s100"); a("s_lshl_b32 s71, s71, 10"); a("s_add_u32 s71, s71, 0x%x" % FP)
a("s_and_b32 s76, s%d, 3" % sX8); a("s_mul_i32 s76, s76, 896"); a("s_lshl_b32 s99, s89, 7"); a("s_add_u32 s76, s76, s99")
a("s_lshr_b32 s99, s%d, 2" % sX8); a("s_lshl_b32 s99, s99, 6"); a("s_add_u32 s76, s76, s99"); a("s_lshl_b32 s99, s88, 3"); a("s_add_u32 s76, s76, s99")
a("s_lshl_b32 s77, s%d, 2" % sX8); a("s_add_u32 s77, s77, s88"); a("s_lshl_b32 s77, s77, 6"); a("s_lshl_b32 s99, s89, 16"); a("s_add_u32 s77, s77, s99"); a("s_add_u32 s77, s77, 0x%x" % FP)
a("v_lshlrev_b32 v204, 1, v5")
a("v_lshrrev_b32 v205, 2, v0"); a("v_lshlrev_b32 v205, 11, v205"); a("v_lshl_add_u32 v205, v5, 4, v205")
tr_addrs()
for tp in range(4): a("v_add_u32 v%d, s92, v%d" % (12 + tp, 12 + tp))
vWD, vQG, vQW, vQR, vSW, vBI, vHG, vST, vOG, vRW, vRR, vL16, vFL, vZ = 184, 185, 186, 187, 188, 189, 190, 191, 192, 193, 194, 195, 196, 197
a("v_mul_u32_u24 v212, 896, v11"); a("v_add_u32 v%d, v212, v10" % vWD)
a("v_and_b32 v6, 1, v4"); a("v_lshlrev_b32 v7, 1, v6"); a("v_xor_b32 v7, v7, v0"); a("v_and_b32 v7, 7, v7"); a("v_lshl_add_u32 v212, v7, 4, v212"); a("v_xor_b32 v213, 64, v212")
a("v_lshlrev_b32 v208, 10, v4"); a("v_lshl_add_u32 v208, v3, 7, v208"); a("v_lshl_add_u32 v208, v5, 3, v208"); a("v_lshl_add_u32 v208, v6, 6, v208")
a("v_bfe_u32 v6, v0, 3, 1"); a("v_lshl_add_u32 v208, v6, 5, v208"); a("v_add_u32 v208, s92, v208")
for tp in range(1, 4): a("v_xor_b32 v%d, %d, v208" % (208 + tp, 32 * tp))
a("v_lshrrev_b32 v7, 5, v0"); a("v_bfe_u32 v9, v0, 4, 1")
if QPACK:
    a("v_lshlrev_b32 v6, 13, v7"); a("v_lshl_add_u32 v6, v9, 10, v6"); a("v_and_b32 v8, 15, v0"); a("v_lshl_add_u32 v%d, v8, 4, v6" % vQG)
    a("v_lshlrev_b32 v6, 7, v9"); a("v_lshl_add_u32 v6, v5, 5, v6"); a("v_lshl_add_u32 v6, v3, 3, v6")
    a("s_mov_b32 s86, 0x0c0c0400"); a("s_mov_b32 s87, 0x04000c0c")
else:
    a("v_lshlrev_b32 v6, 11, v7"); a("v_and_b32 v8, 31, v0"); a("v_lshl_add_u32 v%d, v8, 4, v6" % vQG)
    a("v_lshlrev_b32 v6, 7, v7"); a("v_lshl_add_u32 v6, v5, 5, v6"); a("v_lshl_add_u32 v6, v3, 3, v6"); a("v_lshl_add_u32 v6, v9, 2, v6")
a("s_lshl_b32 s98, s%d, 8" % sWAVE); a("v_add_u32 v%d, s98, v6" % vQW)
a("v_bfe_u32 v6, v0, 2, 1"); a("v_lshlrev_b32 v6, 9, v6"); a("v_lshl_add_u32 v6, v4, 6, v6"); a("v_lshl_add_u32 v%d, v5, 4, v6" % vQR)
a("v_lshlrev_b32 v6, 9, v9"); a("v_lshl_add_u32 v6, v3, 5, v6"); a("s_lshl_b32 s98, s%d, 7" % sWAVE)
a("v_add_u32 v%d, s98, v6" % vSW)
a("v_and_b32 v6, 1, v0"); a("v_lshlrev_b32 v6, 5, v6"); a("v_lshl_add_u32 v%d, v4, 3, v6" % vBI)
a("v_lshlrev_b32 v6, 4, v5"); a("v_lshl_add_u32 v6, v3, 8, v6"); a("v_lshl_add_u32 v%d, v4, 6, v6" % vHG)
a("v_and_b32 v6, 7, v0"); a("v_lshl_add_u32 v6, v4, 3, v6"); a("v_lshlrev_b32 v%d, 4, v6" % vST)
a("v_lshlrev_b32 v%d, 4, v0" % vL16)
a("s_lshl_b32 s98, s%d, 10" % sWAVE); a("v_add_u32 v%d, s98, v%d" % (vRW, vL16))
a("s_lshl_b32 s98, s100, 3"); a("v_add_u32 v%d, s98, v%d" % (vRR, vL16))
a("s_lshl_b32 s98, s%d, 2" % sWAVE); a("v_mov_b32 v%d, s98" % vFL); a("v_mov_b32 v%d, 0" % vZ)
ACC, PO = 156, 160
for i in range(4): a("v_mov_b32 v%d, 0" % (ACC + i))
make_tag()
a("v_mov_b32 v%d, s%d" % (PO + 1, sTAG)); a("v_mov_b32 v%d, s%d" % (PO + 3, sTAG))
QG, HB, HG, SG, OG = 84, 164, 168, 200, 100
NQ = 2 if QPACK else 4
def issue_q():
    for k in range(NQ): a("buffer_load_dwordx4 %s, v%d, %s, s%d offen sc1" % (v4(QG + 4 * k), vQG, srd(SRD_WS), 94 + k))
def issue_h():
    for k, so in enumerate((66, 73)): a("buffer_load_dwordx4 %s, v%d, %s, s%d offen sc1" % (v4(HG + 4 * k), vHG, srd(SRD_WS), so))
def issue_o():
    for hf in range(2):
        for z in range(2): a("buffer_load_dwordx4 %s, v%d, %s, s69 offen offset:%d sc1" % (v4(OG + 8 * hf + 4 * z), vL16, srd(SRD_WS), 2048 * hf + 1024 * z))
    a("buffer_load_dwordx4 %s, v%d, %s, s68 offen sc1" % (v4(SG), vST, srd(SRD_WS)))
def wdma(s, so):
    for t in range(4):
        a("buffer_load_dwordx4 v%d, %s, s%d offen%s lds" % ((212 + (t & 1)) if s == SRD_T else vWD, srd(s), so, POL))
        if t < 3: a("s_add_u32 m0, m0, 1024"); a("s_add_u32 s%d, s%d, %d" % (so, so, 8 * 896))
def issue_w(lbl):
    a("s_add_u32 m0, s92, %d" % LW)
    wdma(SRD_T, 64)
    a("s_cmp_ge_u32 s90, 7"); a("s_cbranch_scc1 %s" % lbl)
    a("s_add_u32 m0, s92, %d" % LW2)
    wdma(SRD_W2, 65)
    a("%s:" % lbl)
if opt["touch"] == "1":
    a("s_mov_b64 exec, 1")
    a("s_cmp_eq_u32 s%d, 0" % sWAVE); a("s_cbranch_scc0 T1"); a("buffer_load_dword v214, v%d, %s, s64 offen" % (vZ, srd(SRD_T))); a("T1:")
    a("s_cmp_eq_u32 s%d, 1" % sWAVE); a("s_cbranch_scc0 T2"); a("buffer_load_dword v214, v%d, %s, s65 offen" % (vZ, srd(SRD_W2))); a("T2:")
    a("s_cmp_eq_u32 s%d, 2" % sWAVE); a("s_cbranch_scc0 T3"); a("global_load_dword v214, v%d, %s" % (vZ, sp(pOUT))); a("T3:")
    a("s_cmp_eq_u32 s%d, 3" % sWAVE); a("s_cbranch_scc0 T4"); a("buffer_load_dword v214, v%d, %s, 0 offen" % (vZ, srd(SRD_O))); a("T4:")
    a("s_mov_b64 exec, -1")
stamp(2)
a("s_barrier")
for i in range(N1, 16): kload(i)
if int(opt["nv1"]): a("s_barrier")
def small_loads(lbl):
    if EARLY:
        a("s_cmp_lg_u32 s%d, 3" % sWAVE); a("s_cbranch_scc1 K_NOT")
        a("s_cmp_ge_u32 s%d, 4" % sX8); a("s_cselect_b32 s99, s78, s77"); a("s_mov_b64 exec, s[84:85]")
        a("buffer_load_dword v208, v198, %s, s99 offen sc1" % srd(SRD_WS))
        a("s_mov_b64 exec, -1")
        a("K_NOT:")
    a("s_cmp_lg_u32 s%d, 2" % sWAVE); a("s_cbranch_scc1 K_NOX")
    a("buffer_load_ushort v206, v204, %s, s76 offen" % srd(SRD_X)); a("buffer_load_ushort v207, v204, %s, s76 offen offset:32" % srd(SRD_X))
    a("K_NOX:")
    a("s_cmp_ge_u32 s90, 7"); a("s_cbranch_scc1 %s" % lbl)
    a("buffer_load_dwordx2 %s, v%d, %s, s67 offen" % (v2(HB), vBI, srd(SRD_O)))
    issue_h()
    a("%s:" % lbl)
if opt["hlate"] != "1":
    a("s_cmp_ge_u32 s%d, 28" % sR); a("s_cbranch_scc1 K_NOH")
    small_loads("K_NOH")
issue_q()
stamp(3)
if opt["b2b"] == "1": a("s_barrier")
a("s_waitcnt vmcnt(0)")
def copy_b():
    a("s_lshl_b32 s98, s39, %d" % QSH); a("s_add_u32 s98, s98, 0x%x" % QP)
    h_unit(99, 100)
    a("buffer_load_dwordx4 v[116:119], v%d, %s, s98 offen sc1" % (vL16, srd(SRD_WS)))
    if not QPACK: a("buffer_load_dwordx4 v[120:123], v%d, %s, s98 offen offset:1024 sc1" % (vL16, srd(SRD_WS)))
    a("buffer_load_dwordx4 v[124:127], v%d, %s, s99 offen sc1" % (vL16, srd(SRD_WS)))
    a("s_add_u32 s98, s98, 0x%x" % DB); a("s_add_u32 s99, s99, 0x%x" % DB)
    a("s_waitcnt vmcnt(0)")
    a("buffer_store_dwordx4 v[116:119], v%d, %s, s98 offen sc1" % (vL16, srd(SRD_WS)))
    if not QPACK: a("buffer_store_dwordx4 v[120:123], v%d, %s, s98 offen offset:1024 sc1" % (vL16, srd(SRD_WS)))
    a("s_and_b32 s100, s%d, 1" % sB); a("s_lshl_b32 s100, s100, 1"); a("s_lshl_b32 exec_lo, 0x33333333, s100"); a("s_mov_b32 exec_hi, exec_lo")
    a("buffer_store_dwordx4 v[124:127], v%d, %s, s99 offen sc1" % (vL16, srd(SRD_WS)))
    a("s_mov_b64 exec, -1")
def retry_q():
    issue_q()
    if QLOC:
        for k in range(NQ): a("s_xor_b32 s%d, s%d, 0x%x" % (94 + k, 94 + k, DB))
        if opt["nob"] == "2":
            a("s_bitcmp1_b32 s94, 22"); a("s_cbranch_scc1 PQ_nocopy")
            copy_b()
            a("PQ_nocopy:")
def retry_h():
    issue_h()
    if QLOC:
        for so in (66, 73): a("s_xor_b32 s%d, s%d, 0x%x" % (so, so, DB))
if QPACK:
    a("PQ_chk:")
    for k in range(2):
        q = QG + 4 * k; t = QG + 8 + 2 * k
        a("v_perm_b32 v%d, v%d, v%d, s86" % (t, q + 1, q)); a("v_perm_b32 v%d, v%d, v%d, s87" % (t + 1, q + 3, q + 2)); a("v_or_b32 v%d, v%d, v%d" % (t, t, t + 1))
    check_tags([], [QG + 8, QG + 10])
    a("s_cbranch_scc0 PQ_retry")
    a("PQ_ok:")
    a("s_nop 2")
    RETRY.append(("PQ", retry_q, SLP))
    stamp(4)
    for r in range(8): a("v_and_b32 v%d, 0xffffff00, v%d" % (QG + r, QG + r))
    for r in range(4): a("v_add_f32 v%d, v%d, v%d" % (QG + r, QG + r, QG + 4 + r))
    for r in range(4): a("v_mov_b32 v%d, v%d" % (QG + 4 + r, QG + r))
    for r in range(4): a("v_permlane32_swap_b32 v%d, v%d" % (QG + r, QG + 4 + r))
    for r in range(4): a("v_add_f32 v%d, v%d, v%d" % (QG + r, QG + r, QG + 4 + r))
    a("v_cvt_pk_bf16_f32 v%d, v%d, v%d" % (QG, QG, QG + 1)); a("v_cvt_pk_bf16_f32 v%d, v%d, v%d" % (QG + 1, QG + 2, QG + 3))
    a("ds_write_b64 v%d, %s offset:%d" % (vQW, v2(QG), LQ))
    for t in (QG + 8, QG + 10): a("v_cmpx_eq_u32 vcc, s%d, v%d" % (sXCC, t))
else:
    poll_check("PQ", retry_q, [QG + 4 * k + 1 for k in range(4)], [QG + 4 * k + 3 for k in range(4)], sleep=SLP)
    stamp(4)
    a("v_add_f32 v%d, v%d, v%d" % (QG, QG, QG + 4)); a("v_add_f32 v%d, v%d, v%d" % (QG + 2, QG + 2, QG + 6))
    a("v_add_f32 v%d, v%d, v%d" % (QG + 8, QG + 8, QG + 12)); a("v_add_f32 v%d, v%d, v%d" % (QG + 10, QG + 10, QG + 14))
    a("v_add_f32 v%d, v%d, v%d" % (QG, QG, QG + 8)); a("v_add_f32 v%d, v%d, v%d" % (QG + 2, QG + 2, QG + 10))
    a("v_cvt_pk_bf16_f32 v%d, v%d, v%d" % (QG, QG, QG + 2))
    a("ds_write_b32 v%d, v%d offset:%d" % (vQW, QG, LQ))
    for k in range(4): a("v_cmpx_eq_u32 vcc, s%d, v%d" % (sXCC, QG + 4 * k + 3))
a("s_cmp_eq_u64 exec, -1"); a("s_mov_b64 exec, -1")
if QLOC and opt["nob"] == "2":
    a("s_cbranch_scc0 K_COPYB")
    a("K_COPYB_ret:")
a("s_cselect_b32 s98, 2, 1")
a("v_mov_b32 v82, s98")
a("s_waitcnt lgkmcnt(0)")
a("ds_write_b32 v%d, v82 offset:%d" % (vFL, LFLAG))
a("s_mov_b32 s99, %d" % (SPIN * 16))
a("PF:")
a("ds_read_b128 %s, v%d offset:%d" % (v4(QG + 4), vZ, LFLAG))
a("s_waitcnt lgkmcnt(0)")
a("v_min3_u32 v82, v%d, v%d, v%d" % (QG + 4, QG + 5, QG + 6)); a("v_min_u32 v82, v82, v%d" % (QG + 7))
a("v_readfirstlane_b32 s101, v82")
a("s_cmp_lg_u32 s101, 0")
a("s_cbranch_scc1 PF_ok")
a("s_sub_u32 s99, s99, 1")
a("s_cbranch_scc0 PF")
a("PF_ok:")
QF = 92
a("ds_read_b128 %s, v%d offset:%d" % (v4(QF), vQR, LQ)); a("ds_read_b128 %s, v%d offset:%d" % (v4(QF + 4), vQR, LQ + 256))
DQ, SC = 116, 148
a("s_waitcnt lgkmcnt(0)")
for t in range(8): a("%s %s, %s, %s, 0" % (MF, v4(DQ + 4 * t), v4(QF), v4(KR + 8 * t)))
for t in range(8): a("%s %s, %s, %s, %s" % (MF, v4(DQ + 4 * t), v4(QF + 4), v4(KR + 8 * t + 4), v4(DQ + 4 * t)))
for r in range(4):
    for t in range(8):
        qp = "quad_perm:[%d,%d,%d,%d]" % (r, r, r, r)
        if r == 0: a("v_mov_b32_dpp v%d, v%d %s%s" % (SC + t, DQ + 4 * t, qp, DPPM))
        else: a("v_add_f32_dpp v%d, v%d, v%d %s%s" % (SC + t, DQ + 4 * t + r, SC + t, qp, DPPM))
a("ds_write_b128 v%d, %s offset:%d" % (vSW, v4(SC), LS)); a("ds_write_b128 v%d, %s offset:%d" % (vSW, v4(SC + 4), LS + 16))
a("s_cmp_eq_u32 s101, %d" % (2 if opt["local"] == "1" else 3)); a("s_cselect_b32 s98, 0, 0x%x" % (RB - RA))
a("s_add_u32 s68, s68, s98")
if EARLY:
    a("s_cmp_eq_u32 s98, 0"); a("s_cselect_b32 s98, 0x%x, 0" % FLD)
    a("s_and_b32 s99, s%d, 3" % sX8); a("v_cmp_eq_u32 s[84:85], s99, v4")
    a("v_mov_b32 v198, s98"); a("v_cndmask_b32 v198, 0, v198, s[84:85]"); a("v_add_u32 v198, v205, v198")
    a("s_cmp_ge_u32 s%d, 4" % sX8); a("s_cselect_b64 vcc, -1, 0")
    a("v_cndmask_b32 v199, v205, v198, vcc"); a("v_cndmask_b32 v205, v198, v205, vcc")
    a("s_lshr_b32 s99, s%d, 2" % sX8); a("s_cmp_eq_u32 s99, s%d" % sWAVE); a("s_cselect_b32 s70, s98, 0")
    a("s_add_u32 s78, s77, 32768")
a("s_waitcnt lgkmcnt(0)")
stamp(5)
a("s_barrier")
stamp(6)
a("s_cmp_eq_u32 s101, 2"); a("s_cbranch_scc0 K_COPYB2")
a("K_COPYB2_ret:")
a("s_cmp_ge_u32 s%d, 28" % sR)
a("s_cbranch_scc1 KFINISH")
if opt["hlate"] == "1": small_loads("K_NOH")
issue_w("K_W2")
AF = 80
WOF, W2F, DM, DO = 116, 132, 48, 16
def wfrags(lbl):
    for tp in range(4):
        for m in range(2): a("ds_read_b64_tr_b16 %s, v%d offset:%d" % (v2(WOF + 4 * tp + 2 * m), 208 + tp, LW + 512 * m))
    a("s_cmp_ge_u32 s90, 7"); a("s_cbranch_scc1 %s" % lbl)
    for tp in range(4):
        for m in range(2): a("ds_read_b64_tr_b16 %s, v%d offset:%d" % (v2(W2F + 4 * tp + 2 * m), 12 + tp, LW2 + 2048 * m))
    a("s_waitcnt lgkmcnt(0)")
    for tp in range(4): a("%s %s, %s, %s, 0" % (MF, v4(DM + 4 * tp), v4(AF), v4(W2F + 4 * tp)))
    for tp in range(4): a("v_mov_b32 v%d, v%d" % (ACC + tp, DM + 4 * tp))
    a("%s:" % lbl)
if WFIRST: wfrags("NOMLP2")
a("s_barrier")
stamp(8)
OL = [(OG, vL16, 70, 0), (OG + 8, vL16, 70, 1024), (SG, vST, 68, 0)]
OM = [94, 96, 98]
a("s_cmp_eq_u32 s101, %d" % (2 if opt["local"] == "1" else 3)); a("s_cbranch_scc0 K_REMOTE")
for (r, va, so, off) in OL: a("buffer_load_dwordx4 %s, v%d, %s, s%d offen offset:%d sc1" % (v4(r), va, srd(SRD_WS), so, off))
a("K_WF:")
a("s_cmp_ge_u32 s90, 7")
a("s_cbranch_scc1 NOMLP1")
a("s_waitcnt vmcnt(11)")
a("PH_chk:")
for k in range(2):
    q = HG + 4 * k; t = HG + 8 + 2 * k
    a("v_perm_b32 v%d, v%d, v%d, s86" % (t, q + 1, q)); a("v_perm_b32 v%d, v%d, v%d, s87" % (t + 1, q + 3, q + 2)); a("v_or_b32 v%d, v%d, v%d" % (t, t, t + 1))
check_tags([], [HG + 8, HG + 10])
a("s_cbranch_scc0 PH_retry")
a("PH_ok:")
RETRY.append(("PH", retry_h, SLP))
for r in range(8): a("v_and_b32 v%d, 0xffffff00, v%d" % (HG + r, HG + r))
hv = [HG + r for r in range(4)]
for x in hv: a("v_add_f32 v%d, v%d, v%d" % (x, x, x + 4))
for k in range(2): a("v_lshlrev_b32 v%d, 16, v%d" % (HG + 4 + 2 * k, HB + k)); a("v_and_b32 v%d, 0xffff0000, v%d" % (HG + 5 + 2 * k, HB + k))
for x in hv: dpp_red("v_add_f32", x, "quad_perm:[2,3,0,1]")
for x in hv: a("v_add_f32 v%d, v%d, v%d" % (x, x, x + 4))
a("s_mov_b32 s96, 0x%x" % f2u(-LOG2E))
T1, T2 = 16, 24
for k, x in enumerate(hv): a("v_mul_f32 v%d, s96, |v%d|" % (x + 4, x))
for k, x in enumerate(hv): a("v_exp_f32 v%d, v%d" % (x + 4, x + 4))
for k, x in enumerate(hv):
    a("v_cmp_lt_f32 vcc, 0, v%d" % x)
    a("v_mul_f32 v%d, v%d, v%d" % (T1 + k, x + 4, x + 4))
    a("v_cndmask_b32 v%d, 1.0, v%d, vcc" % (T2 + k, T1 + k))
    a("v_cndmask_b32_e64 v%d, v%d, 1.0, vcc" % (T1 + k, T1 + k))
    a("v_fma_f32 v%d, v%d, 2.0, v%d" % (T1 + k, x + 4, T1 + k))
    a("v_fma_f32 v%d, v%d, 2.0, v%d" % (T2 + k, T2 + k, T1 + k))
for k, x in enumerate(hv): a("v_rcp_f32 v%d, v%d" % (T2 + k, T2 + k))
for k, x in enumerate(hv): a("v_mul_f32 v%d, v%d, v%d" % (x, x, T1 + k))
for k, x in enumerate(hv): a("v_mul_f32 v%d, v%d, v%d" % (x, x, T2 + k))
AF = 80
a("v_cvt_pk_bf16_f32 v%d, v%d, v%d" % (HG, HG, HG + 1)); a("v_cvt_pk_bf16_f32 v%d, v%d, v%d" % (HG + 1, HG + 2, HG + 3))
for k in range(4): a("v_mov_b32_dpp v%d, v%d quad_perm:[%d,%d,%d,%d]%s" % ((AF + k, HG + (k & 1)) + (k >> 1,) * 4 + (DPPM,)))
a("NOMLP1:")
a("s_waitcnt vmcnt(3)")
stamp(7)
wfrags("NOMLP2")
a("s_waitcnt vmcnt(0)")
a("PO_chk:")
for k in range(2):
    r = OL[k][0]
    a("v_max3_u32 v%d, v%d, v%d, v%d" % (r + 4, r, r + 1, r + 2)); a("v_max_u32 v%d, v%d, v%d" % (r + 4, r + 4, r + 3))
    a("v_cmp_eq_u32 %s, -1, v%d" % (sp(OM[k]), r + 4))
a("v_cmp_ne_u32 vcc, s%d, v%d" % (sTAG, SG + 1)); a("v_cmp_ne_u32 %s, s%d, v%d" % (sp(OM[2]), sTAG, SG + 3)); a("s_or_b64 %s, %s, vcc" % (sp(OM[2]), sp(OM[2])))
a("s_or_b64 vcc, %s, %s" % (sp(OM[0]), sp(OM[1]))); a("s_or_b64 vcc, vcc, %s" % sp(OM[2]))
a("s_cbranch_scc1 PO_retry")
a("PO_ok:")
def issue_om():
    a("s_cmp_eq_u32 s101, %d" % (2 if opt["local"] == "1" else 3)); a("s_cbranch_scc0 PO_ok")
    for k, ((r, va, so, off), m) in enumerate(zip(OL, OM)):
        a("s_mov_b64 exec, %s" % sp(m)); a("s_cbranch_execz PO_s%d" % k)
        a("buffer_load_dwordx4 %s, v%d, %s, s%d offen offset:%d sc1" % (v4(r), va, srd(SRD_WS), so, off))
        a("PO_s%d:" % k)
    a("s_mov_b64 exec, -1")
RETRY.append(("PO", issue_om, int(opt["oslp"])))
stamp(9)
RG = 20
RV = (205, 205)
a("v_mov_b32 v%d, v%d" % (SG + 1, SG))
a("s_waitcnt lgkmcnt(0)")
fops = [lambda: dpp_red("v_max_f32", SG + 1, "quad_perm:[1,0,3,2]"), lambda: dpp_red("v_max_f32", SG + 1, "quad_perm:[2,3,0,1]"),
        lambda: dpp_red("v_max_f32", SG + 1, "row_half_mirror"),
        lambda: (a("v_sub_f32 v%d, v%d, v%d" % (SG, SG, SG + 1)), a("v_exp_f32 v%d, v%d" % (SG, SG))),
        lambda: a("v_mul_f32 v%d, v%d, v%d" % (SG + 2, SG + 2, SG)),
        lambda: dpp_red("v_add_f32", SG + 2, "quad_perm:[1,0,3,2]"), lambda: dpp_red("v_add_f32", SG + 2, "quad_perm:[2,3,0,1]"),
        lambda: dpp_red("v_add_f32", SG + 2, "row_half_mirror")]
k = 0
for hf in range(2):
    for tp in range(4):
        a("%s %s, %s, %s, 0" % (MF, v4(DO + 16 * hf + 4 * tp), v4(OG + 8 * hf), v4(WOF + 4 * tp)))
        fops[k](); k += 1
a("v_rcp_f32 v%d, v%d" % (SG + 2, SG + 2)); a("v_mul_f32 v%d, v%d, v%d" % (SG, SG, SG + 2))
for hf in range(2):
    for r in range(4):
        for tp in range(4):
            a("v_fmac_f32_dpp v%d, v%d, v%d row_newbcast:%d%s" % (ACC + tp, SG, DO + 16 * hf + 4 * tp + r, 4 * hf + r, DPPM))
a("ds_write_b128 v%d, %s offset:%d" % (vRW, v4(ACC), LRED))
a("s_waitcnt lgkmcnt(0)")
a("s_barrier")
for u in range(4): a("ds_read_b64 %s, v%d offset:%d" % (v2(16 + 2 * u), vRR, LRED + 1024 * u))
if EARLY:
    a("s_cmp_lg_u32 s%d, 0" % sWAVE); a("s_cbranch_scc1 K_NOE")
    for y in range(2): a("buffer_load_dwordx4 %s, v%d, %s, s%d offen%s" % (v4(RG + 4 * y), RV[y], srd(SRD_WS), 77 + y, RPOL))
    a("K_NOE:")

a("s_waitcnt lgkmcnt(0)")
a("v_add_f32 v16, v16, v18"); a("v_add_f32 v17, v17, v19"); a("v_add_f32 v20, v20, v22"); a("v_add_f32 v21, v21, v23")
a("v_add_f32 v%d, v16, v20" % PO); a("v_add_f32 v%d, v17, v21" % (PO + 2))
NC = int(opt["ncopy"]); CST = 0x800000
if EARLY:
    a("s_cmp_lt_u32 s%d, 2" % sWAVE)
    a("s_cbranch_scc1 K_LOC")
    a("buffer_store_dwordx4 %s, v%d, %s, s71 offen%s" % (v4(PO), vL16, srd(SRD_WS), RPOL))
    stamp(10)
    a("s_branch KFINISH")
    a("K_LOC:")
    a("s_cmp_eq_u32 s70, 0"); a("s_cbranch_scc1 K_NOLOC")
    a("s_add_u32 s71, s71, s70"); a("s_mov_b64 exec, s[84:85]")
    a("buffer_store_dwordx4 %s, v%d, %s, s71 offen" % (v4(PO), vL16, srd(SRD_WS)))
    a("s_mov_b64 exec, -1")
    a("K_NOLOC:")
    stamp(10)
    a("s_cmp_lg_u32 s%d, 0" % sWAVE)
    a("s_cbranch_scc1 KFINISH")
else:
    a("s_cmp_lt_u32 s%d, 2" % sWAVE)
    a("s_cbranch_scc1 KFINISH")
    a("buffer_store_dwordx4 %s, v%d, %s, s71 offen%s" % (v4(PO), vL16, srd(SRD_WS), RPOL))
    stamp(10)
    a("s_cmp_lg_u32 s%d, 2" % sWAVE)
    a("s_cbranch_scc1 KFINISH")
a("s_mov_b64 %s, %s" % (sp(SRD_O), sp(pOUT)))
a("v_lshlrev_b32 v206, 16, v206"); a("v_lshlrev_b32 v207, 16, v207")
if EARLY:
    a("s_waitcnt vmcnt(0)")
    a("s_branch PR_chk")
else:
    a("s_mov_b64 s[94:95], -1"); a("s_mov_b64 s[96:97], -1")
    a("s_add_u32 s78, s77, 32768")
    if opt["ackw"] == "1": a("s_waitcnt vmcnt(0)")
    if int(opt["rdel"]): a("s_sleep %d" % int(opt["rdel"]))
a("PR:")
for y in range(2):
    a("s_mov_b64 exec, s[%d:%d]" % (94 + 2 * y, 95 + 2 * y))
    a("s_cbranch_execz PR_s%d" % y)
    a("buffer_load_dwordx4 %s, v%d, %s, s%d offen%s" % (v4(RG + 4 * y), RV[y], srd(SRD_WS), 77 + y, RPOL))
    a("PR_s%d:" % y)
a("s_mov_b64 exec, -1")
a("s_waitcnt vmcnt(0)")
a("PR_chk:")
for y in range(2):
    a("v_cmp_ne_u32 vcc, s%d, v%d" % (sTAG, RG + 1 + 4 * y)); a("v_cmp_ne_u32 s[%d:%d], s%d, v%d" % (94 + 2 * y, 95 + 2 * y, sTAG, RG + 3 + 4 * y))
    a("s_or_b64 s[%d:%d], s[%d:%d], vcc" % (94 + 2 * y, 95 + 2 * y, 94 + 2 * y, 95 + 2 * y))
a("v_add_f32 v18, v%d, v%d" % (RG, RG + 4)); a("v_add_f32 v19, v%d, v%d" % (RG + 2, RG + 6))
a("s_or_b64 vcc, s[94:95], s[96:97]")
a("s_cbranch_scc0 PR_ok")
a("s_cmp_eq_u32 s%d, 0" % sSPIN); a("s_cbranch_scc1 PR_ok"); a("s_sub_u32 s%d, s%d, 1" % (sSPIN, sSPIN))
if int(opt["rsl2"]): a("s_sleep %d" % int(opt["rsl2"]))
a("s_branch PR")
a("PR_ok:")
ROLE[0] = "R"
if STAMPS: a("s_memrealtime s[42:43]"); a("s_waitcnt lgkmcnt(0)")
stamp(12)
for x in (18, 19): dpp_red("v_add_f32", x, "row_ror:4")
for x in (18, 19): dpp_red("v_add_f32", x, "row_ror:8")
rows_allreduce("v_add_f32", (18, 19), (8, 9))
a("v_add_f32 v18, v18, v206"); a("v_add_f32 v19, v19, v207")
a("v_cvt_pk_bf16_f32 v18, v18, v19")
a("s_mov_b64 exec, 0xf")
a("buffer_store_short v18, v204, %s, s76 offen" % srd(SRD_O))
a("buffer_store_short_d16_hi v18, v204, %s, s76 offen offset:32" % srd(SRD_O))
a("s_mov_b64 exec, -1")
a("s_cmp_lg_u32 s2, 0")
a("s_cbranch_scc1 KFINISH")
a("v_mov_b32 v8, s%d" % sTAG)
a("s_mov_b64 exec, 1")
a("buffer_store_dword v8, v%d, %s, 0 offen%s" % (vZ, srd(SRD_WS), "" if opt["eplain"] == "1" else " sc1"))
a("s_mov_b64 exec, -1")
a("KFINISH:")
if STAMPS: a("s_add_u32 s%d, s%d, 4" % (sWAVE, sWAVE))
a("FINISH:")
if STAMPS == 1:
    a("s_waitcnt vmcnt(0)")
    stamp(11)
    a("s_lshl_b32 s94, s2, 3"); a("s_add_u32 s94, s94, s%d" % sWAVE); a("s_lshl_b32 s94, s94, 7"); a("s_add_u32 s94, s94, 0x%x" % STAMP_OFF)
    a("v_mov_b32 v1, 0")
    a("s_mov_b64 exec, 1")
    for i in range(12):
        a("v_mov_b32 v4, s%d" % (40 + 2 * i)); a("v_mov_b32 v5, s%d" % (41 + 2 * i))
        a("buffer_store_dwordx2 v[4:5], v1, %s, s94 offen offset:%d" % (srd(SRD_WS), 8 * i))
        a("s_nop 1")
if STAMPS == 2:
    a("s_waitcnt vmcnt(0)")
    stamp(11)
    a("s_cmp_ge_u32 s%d, 28" % sR); a("s_cbranch_scc1 EXIT")
    a("s_and_b32 s94, s%d, 3" % sWAVE); a("s_cmp_lg_u32 s94, 0"); a("s_cbranch_scc1 EXIT")
    a("s_mov_b64 %s, s[84:85]" % sp(SRD_O)); a("s_mov_b32 s%d, 256" % (SRD_O + 2))
    a("s_lshl_b32 s94, s%d, 3" % sWAVE)
    a("v_mov_b32 v1, 0")
    a("s_mov_b64 exec, 1")
    a("s_not_b32 s95, s40")
    sel0 = [None, 0, 3, 4, 7, 9, 10, 11]
    sel4 = [1, 4, 5, 6, 8, 9, 10, 11]
    for i in range(8):
        a("s_cmp_eq_u32 s%d, 0" % sWAVE)
        a("s_cselect_b32 s96, %s, s%d" % ("s95" if sel0[i] is None else "s%d" % (40 + 2 * sel0[i]), 40 + 2 * sel4[i]))
        a("v_mov_b32 v4, s96")
        a("buffer_atomic_umax v4, v1, %s, s94 offen offset:%d sc1" % (srd(SRD_O), 4 * i))
        a("s_nop 1")
if int(opt["hold"]):
    if int(opt["holdx"]) >= 0:
        a("s_cmp_lg_u32 s%d, %d" % (sX8, int(opt["holdx"]))); a("s_cbranch_scc1 EXIT")
    a("s_add_u32 s40, s40, %d" % int(opt["hold"]))
    a("HOLD:")
    a("s_sleep 2")
    a("s_memrealtime s[42:43]"); a("s_waitcnt lgkmcnt(0)")
    a("s_sub_u32 s44, s42, s40"); a("s_cmp_lt_i32 s44, 0"); a("s_cbranch_scc1 HOLD")
a("EXIT:")
a("s_endpgm")
emit_retries()
if QLOC and opt["nob"] == "2":
    a("K_COPYB:")
    copy_b()
    a("s_waitcnt vmcnt(0)")
    a("s_cmp_eq_u32 s98, 0")
    a("s_branch K_COPYB_ret")
a("K_COPYB2:")
copy_b()
a("s_branch K_COPYB2_ret")
a("K_REMOTE:")
issue_o()
a("s_waitcnt vmcnt(0)")
check_tags([OG + 4 * k + j for k in range(4) for j in (1, 3)] + [SG + 1, SG + 3])
a("s_cbranch_scc1 K_REMOTE_ok")
a("s_cmp_eq_u32 s%d, 0" % sSPIN); a("s_cbranch_scc1 K_REMOTE_ok"); a("s_sub_u32 s%d, s%d, 1" % (sSPIN, sSPIN))
a("s_sleep 4")
a("s_branch K_REMOTE")
a("K_REMOTE_ok:")
for hf in range(2):
    o = OG + 8 * hf
    a("v_pk_mov_b32 %s, %s, %s op_sel:[0,0]" % (v2(o), v2(o), v2(o + 2)))
    a("v_pk_mov_b32 %s, %s, %s op_sel:[0,0]" % (v2(o + 2), v2(o + 4), v2(o + 6)))
a("s_branch K_WF")
a("V_REMOTE:")
a("s_add_u32 s95, s95, 0x%x" % (RB - RA))
a("s_lshl_b32 s96, s96, 1"); a("s_add_u32 s96, s96, s97"); a("s_add_u32 s96, s96, 0x%x" % RB)
a("v_lshlrev_b32 v7, 1, v10"); a("v_lshl_add_u32 v7, v5, 8, v7"); a("v_bfe_u32 v9, v0, 3, 1"); a("v_lshl_add_u32 v7, v9, 10, v7")
for r in (OO + 1, OO + 3): a("v_mov_b32 v%d, s%d" % (r, sTAG))
a("s_mov_b64 exec, s[92:93]")
a("buffer_store_dwordx4 %s, v6, %s, s95 offen sc1" % (v4(STT), srd(SRD_WS)))
a("s_mov_b64 exec, -1")
a("s_nop 7")
o_epilogue()
a("buffer_store_dwordx4 %s, v7, %s, s96 offen sc1" % (v4(OO), srd(SRD_WS)))
a("s_branch V_PUB")
lines = hazard.fix(a.lines)
body = "\n".join(lines) + "\n"
body += ".fill 2600, 4, 0xbf810000\n"
open(sys.argv[1], "w").write(wrap(body, 256, 512, LDS_BYTES, vgpr=216))
```

```python
import sys, math, struct
from asmlib import *
import hazard
opt = dict(stamps="0", pol="nt", local="1", spin="1000000", n1="6", b1wait="63", wfirst="0", warm="0", slp="1", rpol="sc1", rpipe="0", rslp="1", b2b="0", hold="0", holdx="-1", holdat="", ncopy="1", ackw="1", rstep="1", nv1="2", oslp="0", hlate="1", omask="1", lightpf="1", compact="1", touch="1", qloc="1", grot="1", nob="2", qwarm="0", cnt="0", early="0", eplain="1", rdel="0", rsl2="0", qpack="1", b2early="0", w1pol="same", gstep="0")
for x in sys.argv[2:]:
    k, v = x.split("="); opt[k] = v
POL = {"nt": " nt", "none": "", "sc1nt": " sc1 nt"}[opt["pol"]]
RPOL = {"sc1": " sc1", "sys": " sc0 sc1"}[opt["rpol"]]
STAMPS = int(opt["stamps"]); SPIN = int(opt["spin"]); N1 = int(opt["n1"]); WFIRST = int(opt["wfirst"]); SLP = int(opt["slp"])

RSTEP = int(opt["rstep"])
QP, HP, RA, RB, STO, FP = 0x10000, 0x90000, 0x100000, 0x200000, 0x80000, 0x300000
if opt["compact"] == "1": QP, HP, RA, RB, STO, FP = 0x8000, 0x88000, 0xD0000, 0x200000, 0x80000, 0x160000
DB = 0x400000
QLOC = opt["qloc"] == "1"
EARLY = opt["early"] == "1"
QPACK = opt["qpack"] == "1"
QSH = 10 if QPACK else 11
FLD = 0x200000
LT0, LT1, LW, LW2, LQ, LS, LRED, LFLAG = 0, 14336, 28672, 45056, 53248, 54272, 55296, 59392
LDS_BYTES = 98304
sWAVE, sX8, sR, sB, sS, sTAG, sSPIN, sXCC, sTGX = 3, 28, 29, 30, 31, 32, 33, 34, 35
SRD_X, SRD_KV, SRD_T, SRD_W2, SRD_WS, SRD_O = 4, 8, 12, 16, 20, 24
pX, pK, pV, pWQ, pWO, pW1, pB1, pW2, pOUT, pWS = 64, 66, 68, 70, 72, 76, 78, 80, 82, 86
sM1, sM2, sM3 = 88, 90, 92
LOG2E = 1.4426950408889634
def f2u(f): return struct.unpack("<I", struct.pack("<f", f))[0]
def srd(n): return "s[%d:%d]" % (n, n + 3)
def sp(n): return "s[%d:%d]" % (n, n + 1)
def v4(n): return "v[%d:%d]" % (n, n + 3)
def v2(n): return "v[%d:%d]" % (n, n + 1)
DPPM = " row_mask:0xf bank_mask:0xf"
MF = "v_mfma_f32_16x16x32_bf16"

a = Asm()
ROLE = ["V"]
def stamp(i):
    if opt["holdat"] == "%s%d" % (ROLE[0], i):
        a("s_memrealtime s[40:41]"); a("s_waitcnt lgkmcnt(0)")
    if STAMPS and i < 12:
        a("s_memrealtime s[%d:%d]" % (40 + 2 * i, 41 + 2 * i)); a("s_waitcnt lgkmcnt(0)")
def rows_allreduce(op, xs, ts):
    for sw in ("v_permlane16_swap_b32", "v_permlane32_swap_b32"):
        for x, t in zip(xs, ts): a("v_mov_b32 v%d, v%d" % (t, x))
        for x, t in zip(xs, ts): a("%s v%d, v%d" % (sw, x, t))
        for x, t in zip(xs, ts): a("%s v%d, v%d, v%d" % (op, x, x, t))
def dpp_red(op, x, ctrl): a("%s_dpp v%d, v%d, v%d %s%s" % (op, x, x, x, ctrl, DPPM))
def bf16_round(x):
    a("v_cvt_pk_bf16_f32 v%d, v%d, v%d" % (x, x, x)); a("v_lshlrev_b32 v%d, 16, v%d" % (x, x))
def check_tags(eq, xo=()):
    for t in eq: a("v_cmpx_eq_u32 vcc, s%d, v%d" % (sTAG, t))
    for t in xo:
        a("v_xor_b32 v%d, s%d, v%d" % (t, sTAG, t)); a("v_cmpx_gt_u32 vcc, 16, v%d" % t)
    a("s_cmp_eq_u64 exec, -1")
    a("s_mov_b64 exec, -1")
RETRY = []
def poll_check(name, issue, eq, xo=(), sleep=None):
    a("%s_chk:" % name)
    check_tags(eq, xo)
    a("s_cbranch_scc0 %s_retry" % name)
    a("%s_ok:" % name)
    a("s_nop 2")
    RETRY.append((name, issue, sleep))
def emit_retries():
    for name, issue, sleep in RETRY:
        a("%s_retry:" % name)
        a("s_cmp_eq_u32 s%d, 0" % sSPIN)
        a("s_cbranch_scc1 %s_ok" % name)
        a("s_sub_u32 s%d, s%d, 1" % (sSPIN, sSPIN))
        if sleep: a("s_sleep %d" % sleep)
        issue()
        a("s_waitcnt vmcnt(0)")
        a("s_branch %s_chk" % name)
def make_tag():
    a("s_waitcnt lgkmcnt(0)")
    a("s_mul_i32 s%d, s%d, 1664525" % (sTAG, sTAG)); a("s_add_u32 s%d, s%d, 1013904223" % (sTAG, sTAG))
def tr_addrs():
    a("v_lshrrev_b32 v12, 2, v0"); a("v_lshlrev_b32 v12, 7, v12"); a("v_lshl_add_u32 v12, v5, 3, v12")
    a("v_and_b32 v13, 3, v11"); a("v_lshl_add_u32 v12, v13, 5, v12")
    for tp in range(1, 4): a("v_xor_b32 v%d, %d, v12" % (12 + tp, 32 * tp))

a("s_cmp_ge_u32 s2, 256")
a("s_cbranch_scc1 EXIT")
if STAMPS or int(opt["hold"]): a("s_memrealtime s[40:41]")
a("s_load_dwordx16 s[64:79], s[0:1], 0")
a("s_load_dwordx8 s[80:87], s[0:1], 64")
a("s_getpc_b64 s[36:37]")
if opt["lightpf"] == "1":
    a("v_lshrrev_b32 v1, 6, v0")
    a("s_lshr_b32 s38, s2, 3"); a("s_mul_i32 s39, s38, 26"); a("s_lshr_b32 s39, s39, 8"); a("s_mul_i32 s39, s39, 10"); a("s_sub_u32 s38, s38, s39"); a("s_lshl_b32 s38, s38, 10")
    a("v_lshl_add_u32 v2, v1, 7, s38")
    a("global_load_dword v215, v2, s[36:37]")
else:
    a("v_mul_u32_u24 v1, 20, v0")
    a("global_load_dword v215, v1, s[36:37]")
    a("v_lshrrev_b32 v1, 6, v0")
a("v_and_b32 v0, 63, v0")
a("v_readfirstlane_b32 s%d, v1" % sWAVE)
a("s_and_b32 s%d, s2, 7" % sX8)
a("s_lshr_b32 s%d, s2, 3" % sR)
a("s_lshr_b32 s%d, s2, 6" % sB)
a("s_bfe_u32 s%d, s2, 0x30003" % sS)
a("s_getreg_b32 s%d, hwreg(HW_REG_XCC_ID, 0, 4)" % sXCC)
a("s_mov_b32 s%d, %d" % (sSPIN, SPIN))
for n, size in ((SRD_X, 3584), (SRD_KV, 1 << 26), (SRD_T, 448 * 8192), (SRD_W2, 1792 * 896), (SRD_WS, 1 << 28), (SRD_O, 3584)):
    a("s_mov_b32 s%d, 0x%x" % (n + 2, size)); a("s_mov_b32 s%d, 0x20000" % (n + 3))
a("s_lshl_b32 s36, s%d, 3" % sB); a("s_add_u32 s36, s36, s%d" % sX8); a("s_lshl_b32 s36, s36, 21")
a("s_lshl_b32 s38, s%d, 12" % sS)
GROT = opt["grot"]
if GROT == "1":
    a("s_lshl_b32 s93, s%d, 1" % sX8); a("s_mul_i32 s37, s%d, 5" % sB); a("s_add_u32 s93, s93, s37"); a("s_lshl_b32 s93, s93, 15"); a("s_and_b32 s93, s93, 0x78000")
elif GROT == "2":
    a("s_lshl_b32 s93, s%d, 2" % sB); a("s_add_u32 s93, s93, s%d" % sX8); a("s_lshl_b32 s93, s93, 15"); a("s_and_b32 s93, s93, 0x78000")
else: a("s_mov_b32 s93, 0")
a("s_add_u32 s36, s36, %d" % (3072 * 512))
a("v_lshrrev_b32 v4, 4, v0"); a("v_and_b32 v5, 3, v0"); a("v_bfe_u32 v3, v0, 2, 2"); a("v_lshrrev_b32 v11, 3, v0")
a("v_lshlrev_b32 v10, 1, v4"); a("v_xor_b32 v10, v10, v0"); a("v_and_b32 v10, 7, v10"); a("v_lshlrev_b32 v10, 4, v10")
a("s_lshl_b32 s39, s%d, 5" % sX8); a("s_add_u32 s39, s39, s%d" % sR)
a("s_mov_b32 s101, s93")
if opt["gstep"] == "1":
    a("s_lshl_b32 s1, s%d, 16" % sB); a("s_add_u32 s1, s1, 32768")
elif opt["gstep"] == "2":
    a("s_lshl_b32 s1, s%d, 16" % sX8); a("s_add_u32 s1, s1, 32768")
a("s_cmp_lg_u32 s%d, 0" % sWAVE)
a("s_cbranch_scc1 NOTW0")
XS, XF = 84, 100
a("s_setprio 3")
a("s_mul_i32 s98, s%d, %d" % (sB, 112 * 8192)); a("s_lshl_b32 s97, s%d, 10" % sX8); a("s_add_u32 s98, s98, s97")
a("s_lshl_b32 s97, s%d, 7" % sS); a("s_add_u32 s98, s98, s97")
a("s_mul_i32 s99, s%d, %d" % (sB, 112 * 3584)); a("s_mul_i32 s97, s%d, 448" % sX8); a("s_add_u32 s99, s99, s97")
a("s_lshl_b32 s97, s%d, 6" % sS); a("s_add_u32 s99, s99, s97")
a("s_cmp_eq_u32 s%d, 7" % sS); a("s_cselect_b32 s99, 0x40000000, s99")
a("v_mul_u32_u24 v6, 896, v3"); a("v_lshl_add_u32 v7, v4, 2, v5")
a("v_lshl_add_u32 v8, v4, 3, v6"); a("v_lshl_add_u32 v1, v7, 3, v6"); a("v_lshl_add_u32 v6, v7, 4, v6")
a("v_lshl_add_u32 v9, v11, 13, v10")
a("v_lshrrev_b32 v2, 2, v0"); a("v_mul_u32_u24 v2, 3584, v2"); a("v_and_b32 v7, 48, v10"); a("v_add_u32 v2, v2, v7")
a("s_mul_i32 s37, s%d, 224" % sB)
a("s_mov_b32 m0, %d" % LT0)
for r in range(20, 24): a("v_mov_b32 v%d, -1" % r)
a("v_lshlrev_b32 v24, 4, v0"); a("s_lshl_b32 s96, s39, 10"); a("s_add_u32 s96, s96, 0x%x" % RA)
a("v_mov_b32 v16, 0"); a("v_mov_b32 v17, 0")
a("ds_write_b64 v16, v[16:17] offset:%d" % LFLAG); a("ds_write_b64 v16, v[16:17] offset:%d" % (LFLAG + 8))
if STAMPS: a("s_memrealtime s[60:61]")
a("s_waitcnt lgkmcnt(0)")
if STAMPS: a("s_memrealtime s[54:55]")
a("s_mov_b64 %s, %s" % (sp(SRD_T), sp(pWQ)))
a("s_mov_b64 %s, %s" % (sp(SRD_X), sp(pX)))
a("s_mov_b64 %s, %s" % (sp(SRD_W2), sp(pW1)))
a("s_mov_b64 %s, %s" % (sp(SRD_WS), sp(pWS)))
for t in range(14):
    a("buffer_load_dwordx4 v9, %s, s98 offen%s lds" % (srd(SRD_T), POL))
    if t == 1:
        a("buffer_store_dwordx4 v[20:23], v24, %s, s96 offen" % srd(SRD_WS))
        for i in range(3): a("buffer_load_dwordx4 %s, v6, %s, 0 offen offset:%d" % (v4(XS + 4 * i), srd(SRD_X), 256 * i))
        a("buffer_load_dwordx2 %s, v1, %s, 0 offen offset:768" % (v2(XS + 12), srd(SRD_X)))
        for m in range(7): a("buffer_load_dwordx2 %s, v8, %s, s37 offen offset:%d" % (v2(XF + 2 * m), srd(SRD_X), 32 * m))
    a("s_add_u32 m0, m0, 1024")
    if t < 13: a("s_add_u32 s98, s98, %d" % (8 * 8192))
for t in range(7):
    a("buffer_load_dwordx4 v2, %s, s99 offen%s lds" % (srd(SRD_W2), POL if opt["w1pol"] == "same" else ""))
    if t < 6: a("s_add_u32 m0, m0, 1024"); a("s_add_u32 s99, s99, %d" % (16 * 3584))
a("s_load_dword s%d, %s, 0" % (sTAG, sp(pWS)))
a("s_mov_b64 %s, %s" % (sp(SRD_KV), sp(pV)))
a("s_branch V_PROJ")

a("NOTW0:")
a("s_cmp_ge_u32 s%d, 4" % sWAVE)
a("s_waitcnt lgkmcnt(0)")
a("s_load_dword s%d, %s, 0" % (sTAG, sp(pWS)))
a("s_mov_b64 %s, %s" % (sp(SRD_WS), sp(pWS)))
a("s_cselect_b64 %s, %s, %s" % (sp(SRD_KV), sp(pK), sp(pV)))
a("s_cbranch_scc1 KWAVE")
if opt["warm"] != "0":
    a("s_lshl_b32 s94, s39, 10"); a("s_add_u32 s94, s94, 0x%x" % RA)
    a("s_lshl_b32 s95, s%d, 10" % sX8); a("s_add_u32 s95, s95, 0x%x" % (RA + STO))
    a("s_cmp_eq_u32 s%d, 0" % sR); a("s_cselect_b32 s95, s95, 0x40000000")
    a("s_cmp_eq_u32 s%d, 2" % sWAVE); a("s_cselect_b32 s94, s95, s94")
    a("s_cmp_eq_u32 s%d, 3" % sWAVE); a("s_cselect_b32 s94, 0x40000000, s94")
    a("v_lshlrev_b32 v1, 4, v0")
if opt["qwarm"] != "0":
    a("s_lshl_b32 s94, s39, 11"); a("s_lshl_b32 s95, s%d, 10" % sWAVE); a("s_add_u32 s94, s94, s95"); a("s_add_u32 s94, s94, 0x%x" % (QP - 1024))
    a("s_lshl_b32 s95, s39, 10"); a("s_add_u32 s95, s95, 0x%x" % HP)
    a("s_cmp_eq_u32 s%d, 3" % sWAVE); a("s_cselect_b32 s94, s95, s94")
    a("v_lshlrev_b32 v1, 4, v0")
    if opt["qwarm"] == "1": a("buffer_load_dwordx4 v[212:215], v1, %s, s94 offen sc1" % srd(SRD_WS))
a("s_barrier")
if opt["qwarm"] == "2": a("buffer_load_dwordx4 v[212:215], v1, %s, s94 offen sc1" % srd(SRD_WS))
if opt["warm"] == "1":
    a("buffer_load_dwordx4 v[212:215], v1, %s, s94 offen sc1" % srd(SRD_WS))
make_tag()
a("s_branch V_B2")

a("KWAVE:")
ROLE[0] = "K"
KR = 16
a("s_sub_u32 s%d, s%d, 4" % (sWAVE, sWAVE))
a("s_setprio 2")
a("v_lshlrev_b32 v1, 9, v3"); a("v_lshl_add_u32 v1, v4, 6, v1"); a("v_lshl_add_u32 v1, v5, 4, v1")
a("s_lshr_b32 s37, s%d, 1" % sWAVE); a("s_lshl_b32 s94, s37, 14"); a("s_xor_b32 s38, s38, s94"); a("s_lshl_b32 s37, s37, 18"); a("s_xor_b32 s93, s93, s37")
a("s_and_b32 s37, s%d, 1" % sWAVE); a("s_lshl_b32 s37, s37, 11"); a("s_add_u32 s36, s36, s37")
a("s_barrier")
def kload(i):
    if not i & 1: a("s_or_b32 s37, s93, s38"); a("s_add_u32 s37, s36, s37")
    a("buffer_load_dwordx4 %s, v1, %s, s37 offen offset:%d%s" % (v4(KR + 4 * i), srd(SRD_KV), (i & 1) * 256, POL))
    if i & 1 and i < 15:
        a("s_add_u32 s93, s93, %s" % ("s1" if opt["gstep"] != "0" else "32768")); a("s_and_b32 s93, s93, 0x78000"); a("s_add_u32 s38, s38, %d" % (4096 * RSTEP)); a("s_and_b32 s38, s38, 0x7000")
for i in range(N1): kload(i)
stamp(1)
a("s_branch K_MAIN")

a("V_PROJ:")
ROLE[0] = "V"
tr_addrs()
a("s_mov_b32 s37, 0x3f803f80")
a("v_mov_b32 v6, 0"); a("v_mov_b32 v7, 0")
WF, DT, PB = 116, 180, 196
for r in [XF + 14, XF + 15] + [WF + 16 * tp + k for tp in range(4) for k in (14, 15)]: a("v_mov_b32 v%d, 0" % r)
for nn, val in ((sM1, 0x22222222), (sM2, 0x44444444), (sM3, 0x88888888)):
    a("s_mov_b32 s%d, 0x%x" % (nn, val)); a("s_mov_b32 s%d, 0x%x" % (nn + 1, val))
a("v_lshlrev_b32 v2, 6, v4"); a("v_lshl_add_u32 v2, v5, 4, v2")
a("v_lshl_add_u32 v1, v3, 9, v2")
a("v_lshl_add_u32 v2, v3, 8, v2")
a("v_lshrrev_b32 v80, 2, v0"); a("v_lshlrev_b32 v80, 6, v80"); a("v_lshl_add_u32 v80, v5, 3, v80")
a("v_and_b32 v81, 1, v4"); a("v_lshl_add_u32 v80, v81, 5, v80"); a("v_xor_b32 v81, 32, v80")
a("s_lshl_b32 s98, s39, %d" % QSH); a("s_add_u32 s98, s98, 0x%x" % QP)
def h_unit(dst, tmp):
    a("s_lshl_b32 s%d, s%d, 1" % (dst, sX8)); a("s_lshr_b32 s%d, s%d, 1" % (tmp, sB)); a("s_add_u32 s%d, s%d, s%d" % (dst, dst, tmp))
    a("s_lshl_b32 s%d, s%d, 3" % (dst, dst)); a("s_add_u32 s%d, s%d, s%d" % (dst, dst, sS)); a("s_lshl_b32 s%d, s%d, 10" % (dst, dst)); a("s_add_u32 s%d, s%d, 0x%x" % (dst, dst, HP))
h_unit(99, 94)
a("s_and_b32 s94, s%d, 1" % sB); a("s_lshl_b32 s94, s94, 5"); a("s_add_u32 s99, s99, s94")
if QPACK:
    for k in range(4): a("s_mov_b32 s%d, 0x%x" % (94 + k, 0x07060500 + k))
if int(opt["b1wait"]) < 63: a("s_waitcnt vmcnt(%d)" % int(opt["b1wait"]))
a("s_barrier")
stamp(1)
a("s_waitcnt vmcnt(26)")
for i in range(14):
    a("v_dot2c_f32_bf16 v6, s37, v%d" % (XS + i)); a("v_dot2c_f32_bf16 v7, v%d, v%d" % (XS + i, XS + i))
for x in (6, 7): dpp_red("v_add_f32", x, "quad_perm:[1,0,3,2]")
for x in (6, 7): dpp_red("v_add_f32", x, "quad_perm:[2,3,0,1]")
rows_allreduce("v_add_f32", (6, 7), (8, 9))
a("v_mul_f32 v6, 0x%x, v6" % f2u(1.0 / 448)); a("v_mul_f32 v7, 0x%x, v7" % f2u(1.0 / 448))
a("v_fma_f32 v7, -v6, v6, v7"); a("v_max_f32 v7, 0, v7")
bf16_round(7); a("v_add_f32 v7, 0x%x, v7" % f2u(1e-5)); bf16_round(7)
a("v_sqrt_f32 v7, v7"); bf16_round(6); bf16_round(7); a("v_rcp_f32 v7, v7")
a("s_waitcnt vmcnt(19)")
a("v_mul_f32 v6, v6, v7")
for i in range(14):
    r = XF + i; t = XS + 2 * (i & 1)
    a("v_lshlrev_b32 v%d, 16, v%d" % (t, r)); a("v_and_b32 v%d, 0xffff0000, v%d" % (t + 1, r))
    a("v_fma_f32 v%d, v%d, v7, -v6" % (t, t)); a("v_fma_f32 v%d, v%d, v7, -v6" % (t + 1, t + 1))
    a("v_cvt_pk_bf16_f32 v%d, v%d, v%d" % (r, t, t + 1))
make_tag()
a("s_xor_b32 s%d, s%d, s%d" % (sTGX, sTAG, sXCC))
a("v_mov_b32 v%d, s%d" % (PB + 3, sTGX))
stamp(2)
a("s_waitcnt vmcnt(7)")
stamp(3)
def proj_mfma(q, d):
    for u in range(4): a("%s %s, %s, %s, %s" % (MF, v4(d), v4(WF + 16 * q + 4 * u), v4(XF + 4 * u), "0" if u == 0 else v4(d)))
for tp in range(4):
    for m in range(7): a("ds_read_b64_tr_b16 %s, v%d offset:%d" % (v2(WF + 16 * tp + 2 * m), 12 + tp, LT0 + 2048 * m))
    if tp >= 1:
        a("s_waitcnt lgkmcnt(7)"); proj_mfma(tp - 1, DT + 4 * (tp - 1))
a("s_waitcnt lgkmcnt(0)")
proj_mfma(3, DT + 12)
QS = "" if QLOC else " sc1"
pq = (lambda r: XS + r) if QPACK else (lambda r: PB + 2 * r)
for r in range(4): a("v_cndmask_b32 v%d, v%d, v%d, %s" % (pq(r), DT + r, DT + 4 + r, sp(sM1)))
for r in range(4): a("v_cndmask_b32 v%d, v%d, v%d, %s" % (pq(r), pq(r), DT + 8 + r, sp(sM2)))
for r in range(4): a("v_cndmask_b32 v%d, v%d, v%d, %s" % (pq(r), pq(r), DT + 12 + r, sp(sM3)))
if QPACK:
    for r in range(4): a("v_perm_b32 v%d, v%d, v%d, s%d" % (XS + r, XS + r, PB + 3, 94 + r))
    a("buffer_store_dwordx4 %s, v2, %s, s98 offen%s" % (v4(XS), srd(SRD_WS), QS))
    if opt["b2early"] == "1":
        a("s_barrier")
        if int(opt["nv1"]): a("s_barrier")
    a("s_waitcnt vmcnt(1)")
else:
    a("buffer_store_dwordx4 %s, v1, %s, s98 offen%s" % (v4(PB), srd(SRD_WS), QS))
    a("buffer_store_dwordx4 %s, v1, %s, s98 offen offset:256%s" % (v4(PB + 4), srd(SRD_WS), QS))
    a("s_waitcnt vmcnt(2)")
for tp in range(2):
    for m in range(7): a("ds_read_b64_tr_b16 %s, v%d offset:%d" % (v2(WF + 16 * tp + 2 * m), 80 + tp, LT1 + 1024 * m))
a("s_waitcnt lgkmcnt(7)"); proj_mfma(0, DT)
a("s_waitcnt lgkmcnt(0)"); proj_mfma(1, DT + 4)
for r in range(4): a("v_cndmask_b32 v%d, v%d, v%d, %s" % (XS + 4 + r, DT + r, DT + 4 + r, sp(sM1)))
for r in range(4): a("v_perm_b32 v%d, v%d, v%d, s%d" % (XS + 4 + r, XS + 4 + r, PB + 3, 94 + r))
a("s_mov_b32 exec_lo, 0x33333333"); a("s_mov_b32 exec_hi, 0x33333333")
a("buffer_store_dwordx4 %s, v2, %s, s99 offen%s" % (v4(XS + 4), srd(SRD_WS), QS))
a("s_mov_b64 exec, -1")
if QLOC and opt["nob"] == "0":
    a("s_add_u32 s98, s98, 0x%x" % DB); a("s_add_u32 s99, s99, 0x%x" % DB)
    a("buffer_store_dwordx4 %s, v1, %s, s98 offen sc1" % (v4(PB), srd(SRD_WS)))
    a("buffer_store_dwordx4 %s, v1, %s, s98 offen offset:256 sc1" % (v4(PB + 4), srd(SRD_WS)))
    a("buffer_store_dwordx4 %s, v2, %s, s99 offen sc1" % (v4(PB + 8), srd(SRD_WS)))
a("s_setprio 0")
if opt["b2early"] == "1": stamp(4); a("s_branch V_B2X")
a("V_B2:")
stamp(4)
a("s_barrier")
a("V_B2X:")
VR, VF, DV = 16, 80, 144
a("v_lshlrev_b32 v1, 9, v11"); a("v_and_b32 v6, 7, v0"); a("v_lshl_add_u32 v1, v6, 4, v1")
a("s_lshl_b32 s37, s%d, 7" % sWAVE); a("s_add_u32 s36, s36, s37")
a("s_mov_b32 s98, 0x05040100"); a("s_mov_b32 s99, 0x07060302")
a("v_bfe_u32 v6, v0, 2, 1"); a("v_lshlrev_b32 v8, 9, v6"); a("v_lshl_add_u32 v8, v4, 6, v8")
a("v_and_b32 v7, 1, v0"); a("v_lshl_add_u32 v8, v7, 5, v8"); a("v_lshlrev_b32 v6, 9, v6")
SS, PFR, STT, TT, OO = 176, 192, 200, 204, 208
a("s_lshl_b32 s95, s%d, 10" % sX8); a("s_lshl_b32 s96, s%d, 4" % sR); a("s_add_u32 s95, s95, s96"); a("s_add_u32 s95, s95, 0x%x" % (RA + STO))
a("s_lshl_b32 s96, s%d, 15" % sX8); a("s_lshl_b32 s97, s%d, 12" % sWAVE); a("s_add_u32 s96, s96, s97")
a("s_lshr_b32 s97, s%d, 2" % sS); a("s_lshl_b32 s97, s97, 10"); a("s_add_u32 s96, s96, s97")
a("s_lshl_b32 s97, s%d, 2" % sB); a("s_and_b32 s94, s%d, 3" % sS); a("s_add_u32 s97, s97, s94"); a("s_lshl_b32 s97, s97, 4")
a("s_add_u32 s94, s96, s97"); a("s_add_u32 s94, s94, 0x%x" % RA)
a("v_bfe_u32 v9, v0, 4, 1"); a("v_lshlrev_b32 v10, 14, v9"); a("v_bfe_u32 v7, v0, 2, 1"); a("v_lshl_add_u32 v10, v7, 11, v10")
a("v_lshl_add_u32 v7, v5, 8, v10")
a("v_mov_b32 v2, 0")
a("s_mov_b32 s100, 0x%x" % f2u(LOG2E / 16))
if opt["b2b"] == "1": a("s_barrier")
stamp(5)
for i in range(16):
    if int(opt["nv1"]) and i == int(opt["nv1"]):
        if opt["b2early"] == "1": a("s_cmp_eq_u32 s%d, 0" % sWAVE); a("s_cbranch_scc1 V_NOB2C")
        a("s_barrier")
        a("V_NOB2C:")
    a("s_or_b32 s37, s101, s38"); a("s_add_u32 s37, s36, s37")
    a("buffer_load_dwordx4 %s, v1, %s, s37 offen%s" % (v4(VR + 4 * i), srd(SRD_KV), POL))
    if i < 15:
        a("s_add_u32 s101, s101, %s" % ("s1" if opt["gstep"] != "0" else "32768")); a("s_and_b32 s101, s101, 0x78000"); a("s_add_u32 s38, s38, %d" % (4096 * (RSTEP + (4 if i == 7 else 0)))); a("s_and_b32 s38, s38, 0x7000")
for r in (STT + 1, STT + 3): a("v_mov_b32 v%d, s%d" % (r, sTAG))
a("s_bitcmp1_b32 s%d, 0" % sWAVE); a("s_cselect_b32 s92, 16, 1"); a("s_mov_b32 s93, 0")
stamp(6)
a("s_barrier")
if opt.get("pro", "0") != "1": stamp(7)
def vperm(pair):
    G, i = pair >> 2, pair & 3
    for m in range(4):
        A = VR + 4 * (2 * pair) + m; B = A + 4
        a("v_perm_b32 v%d, v%d, v%d, s98" % (VF + 32 * G + 4 * (2 * m) + i, B, A))
        a("v_perm_b32 v%d, v%d, v%d, s99" % (VF + 32 * G + 4 * (2 * m + 1) + i, B, A))
for k, off in enumerate((0, 16, 256, 272)): a("ds_read_b128 %s, v8 offset:%d" % (v4(SS + 4 * k), LS + off))
a("ds_read_b128 %s, v2 offset:%d" % (v4(TT), LFLAG))
a("s_waitcnt lgkmcnt(0)")
a("v_min3_u32 v2, v%d, v%d, v%d" % (TT, TT + 1, TT + 2)); a("v_min_u32 v2, v2, v%d" % (TT + 3))
a("v_readfirstlane_b32 s101, v2")
a("v_max3_f32 v8, v%d, v%d, v%d" % (SS, SS + 1, SS + 2)); a("v_max3_f32 v9, v%d, v%d, v%d" % (SS + 3, SS + 4, SS + 5))
a("v_max3_f32 v8, v8, v%d, v%d" % (SS + 6, SS + 7)); a("v_max3_f32 v9, v9, v%d, v%d" % (SS + 8, SS + 9))
a("v_max3_f32 v8, v8, v%d, v%d" % (SS + 10, SS + 11)); a("v_max3_f32 v9, v9, v%d, v%d" % (SS + 12, SS + 13))
a("v_max3_f32 v8, v8, v%d, v%d" % (SS + 14, SS + 15)); a("v_max_f32 v8, v8, v9")
dpp_red("v_max_f32", 8, "quad_perm:[1,0,3,2]")
rows_allreduce("v_max_f32", (8,), (9,))
a("v_mul_f32 v%d, s100, v8" % STT)
for k in range(16): a("v_fma_f32 v%d, v%d, s100, -v%d" % (SS + k, SS + k, STT))
for k in range(16): a("v_exp_f32 v%d, v%d" % (SS + k, SS + k))
for k in range(8): a("v_cvt_pk_bf16_f32 v%d, v%d, v%d" % (PFR + k, SS + 2 * k, SS + 2 * k + 1))
for k in range(8): a("v_add_f32 v%d, v%d, v%d" % (SS + k, SS + k, SS + 8 + k))
for k in range(4): a("v_add_f32 v%d, v%d, v%d" % (SS + k, SS + k, SS + 4 + k))
a("v_add_f32 v%d, v%d, v%d" % (SS, SS, SS + 2)); a("v_add_f32 v%d, v%d, v%d" % (SS + 1, SS + 1, SS + 3))
a("v_add_f32 v%d, v%d, v%d" % (STT + 2, SS, SS + 1))
dpp_red("v_add_f32", STT + 2, "quad_perm:[1,0,3,2]")
rows_allreduce("v_add_f32", (STT + 2,), (9,))
def pv_mfma(G):
    for j in range(8): a("%s %s, %s, %s, %s" % (MF, v4(DV + 4 * j), v4(PFR + 4 * G), v4(VF + 32 * G + 4 * j), "0" if G == 0 else v4(DV + 4 * j)))
for p in range(8):
    a("s_waitcnt vmcnt(%d)" % (16 - 2 * (p + 1))); vperm(p)
    if p == 3: pv_mfma(0)
stamp(8)
pv_mfma(1)
a("s_cmp_eq_u32 s101, %d" % (2 if opt["local"] == "1" else 3))
a("s_cbranch_scc0 V_REMOTE")
a("s_mov_b64 exec, s[92:93]")
a("buffer_store_dwordx4 %s, v6, %s, s95 offen" % (v4(STT), srd(SRD_WS)))
a("s_mov_b64 exec, -1")
def o_epilogue():
    for j in range(4): a("v_add_f32_dpp v%d, v%d, v%d row_ror:8 row_mask:0xf bank_mask:0x3" % (TT + j, DV + 4 * j + 1, DV + 4 * j))
    for j in range(4, 8): a("v_add_f32_dpp v%d, v%d, v%d row_ror:8 row_mask:0xf bank_mask:0xc" % (TT + j - 4, DV + 4 * j, DV + 4 * j + 1))
    a("v_cvt_pk_bf16_f32 v%d, v%d, v%d" % (OO, TT, TT + 1)); a("v_cvt_pk_bf16_f32 v%d, v%d, v%d" % (OO + 2, TT + 2, TT + 3))
    a("s_mov_b32 exec_hi, 0")
for j in range(8): a("v_add_f32_dpp v%d, v%d, v%d row_ror:8%s" % (SS + j, DV + 4 * j + 1, DV + 4 * j, DPPM))
for k in range(4): a("v_cvt_pk_bf16_f32 v%d, v%d, v%d" % (OO + k, SS + 2 * k, SS + 2 * k + 1))
a("s_mov_b64 exec, 0x00ff00ff")
a("buffer_store_dwordx4 %s, v7, %s, s94 offen" % (v4(OO), srd(SRD_WS)))
a("V_PUB:")
a("s_mov_b64 exec, -1")
stamp(9)
a("s_cmp_ge_u32 s%d, 28" % sR)
a("s_cbranch_scc1 FINISH")
a("s_barrier")
a("s_barrier")
a("s_branch FINISH")

a("K_MAIN:")
ROLE[0] = "K"
a("s_and_b32 s88, s%d, 3" % sR); a("s_lshr_b32 s89, s%d, 2" % sR)
a("s_mov_b64 %s, %s" % (sp(SRD_T), sp(pWO))); a("s_mov_b64 %s, %s" % (sp(SRD_W2), sp(pW2))); a("s_mov_b64 %s, %s" % (sp(SRD_O), sp(pB1)))
a("s_mov_b64 %s, %s" % (sp(SRD_X), sp(pX)))
a("s_lshl_b32 s92, s%d, 12" % sWAVE)
a("s_lshl_b32 s90, s%d, 2" % sWAVE); a("s_add_u32 s90, s90, s88")
a("s_mul_i32 s91, s%d, 7" % sX8); a("s_add_u32 s91, s91, s90")
a("s_cmp_ge_u32 s%d, 28" % sR); a("s_cselect_b32 s90, 7, s90")
a("s_lshl_b32 s64, s%d, 4" % sX8); a("s_lshl_b32 s97, s88, 2"); a("s_add_u32 s64, s64, s97"); a("s_add_u32 s64, s64, s%d" % sWAVE)
a("s_mul_i32 s64, s64, %d" % (32 * 896)); a("s_lshl_b32 s97, s89, 7"); a("s_add_u32 s64, s64, s97")
a("s_mul_i32 s65, s91, %d" % (32 * 896)); a("s_add_u32 s65, s65, s97")
a("s_lshl_b32 s94, s%d, 16" % sX8); a("s_add_u32 s94, s94, s92")
a("s_lshl_b32 s95, s%d, 9" % sB); a("s_add_u32 s94, s94, s95")
if QPACK: a("s_lshr_b32 s94, s94, 1")
a("s_add_u32 s94, s94, 0x%x" % QP)
for k in range(1, 4): a("s_add_u32 s%d, s94, %d" % (94 + k, 16384 * k))
a("s_lshl_b32 s66, s%d, 4" % sX8); a("s_add_u32 s66, s66, s90"); a("s_lshl_b32 s66, s66, 10"); a("s_add_u32 s66, s66, 0x%x" % HP)
a("s_lshl_b32 s67, s91, 6")
a("s_lshl_b32 s68, s%d, 1" % sX8); a("s_lshr_b32 s99, s88, 1"); a("s_add_u32 s68, s68, s99"); a("s_lshl_b32 s68, s68, 9"); a("s_add_u32 s68, s68, 0x%x" % (RA + STO))
a("s_lshl_b32 s69, s%d, 16" % sX8); a("s_lshl_b32 s99, s88, 14"); a("s_add_u32 s69, s69, s99"); a("s_add_u32 s69, s69, s92")
a("s_lshr_b32 s70, s69, 1"); a("s_add_u32 s70, s70, 0x%x" % RA); a("s_add_u32 s69, s69, 0x%x" % RB)
a("s_add_u32 s73, s66, 8192")
a("s_lshl_b32 s71, s89, 5"); a("s_lshl_b32 s99, s%d, 2" % sX8); a("s_add_u32 s71, s71, s99"); a("s_add_u32 s71, s71, s88")
a("s_and_b32 s100, s%d, 1" % sWAVE)
a("s_lshl_b32 s71, s71, 1"); a("s_add_u32 s71, s71, s100"); a("s_lshl_b32 s71, s71, 10"); a("s_add_u32 s71, s71, 0x%x" % FP)
a("s_and_b32 s76, s%d, 3" % sX8); a("s_mul_i32 s76, s76, 896"); a("s_lshl_b32 s99, s89, 7"); a("s_add_u32 s76, s76, s99")
a("s_lshr_b32 s99, s%d, 2" % sX8); a("s_lshl_b32 s99, s99, 6"); a("s_add_u32 s76, s76, s99"); a("s_lshl_b32 s99, s88, 3"); a("s_add_u32 s76, s76, s99")
a("s_lshl_b32 s77, s%d, 2" % sX8); a("s_add_u32 s77, s77, s88"); a("s_lshl_b32 s77, s77, 6"); a("s_lshl_b32 s99, s89, 16"); a("s_add_u32 s77, s77, s99"); a("s_add_u32 s77, s77, 0x%x" % FP)
a("v_lshlrev_b32 v204, 1, v5")
a("v_lshrrev_b32 v205, 2, v0"); a("v_lshlrev_b32 v205, 11, v205"); a("v_lshl_add_u32 v205, v5, 4, v205")
tr_addrs()
for tp in range(4): a("v_add_u32 v%d, s92, v%d" % (12 + tp, 12 + tp))
vWD, vQG, vQW, vQR, vSW, vBI, vHG, vST, vOG, vRW, vRR, vL16, vFL, vZ = 184, 185, 186, 187, 188, 189, 190, 191, 192, 193, 194, 195, 196, 197
a("v_mul_u32_u24 v212, 896, v11"); a("v_add_u32 v%d, v212, v10" % vWD)
a("v_and_b32 v6, 1, v4"); a("v_lshlrev_b32 v7, 1, v6"); a("v_xor_b32 v7, v7, v0"); a("v_and_b32 v7, 7, v7"); a("v_lshl_add_u32 v212, v7, 4, v212"); a("v_xor_b32 v213, 64, v212")
a("v_lshlrev_b32 v208, 10, v4"); a("v_lshl_add_u32 v208, v3, 7, v208"); a("v_lshl_add_u32 v208, v5, 3, v208"); a("v_lshl_add_u32 v208, v6, 6, v208")
a("v_bfe_u32 v6, v0, 3, 1"); a("v_lshl_add_u32 v208, v6, 5, v208"); a("v_add_u32 v208, s92, v208")
for tp in range(1, 4): a("v_xor_b32 v%d, %d, v208" % (208 + tp, 32 * tp))
a("v_lshrrev_b32 v7, 5, v0"); a("v_bfe_u32 v9, v0, 4, 1")
if QPACK:
    a("v_lshlrev_b32 v6, 13, v7"); a("v_lshl_add_u32 v6, v9, 10, v6"); a("v_and_b32 v8, 15, v0"); a("v_lshl_add_u32 v%d, v8, 4, v6" % vQG)
    a("v_lshlrev_b32 v6, 7, v9"); a("v_lshl_add_u32 v6, v5, 5, v6"); a("v_lshl_add_u32 v6, v3, 3, v6")
    a("s_mov_b32 s86, 0x0c0c0400"); a("s_mov_b32 s87, 0x04000c0c")
else:
    a("v_lshlrev_b32 v6, 11, v7"); a("v_and_b32 v8, 31, v0"); a("v_lshl_add_u32 v%d, v8, 4, v6" % vQG)
    a("v_lshlrev_b32 v6, 7, v7"); a("v_lshl_add_u32 v6, v5, 5, v6"); a("v_lshl_add_u32 v6, v3, 3, v6"); a("v_lshl_add_u32 v6, v9, 2, v6")
a("s_lshl_b32 s98, s%d, 8" % sWAVE); a("v_add_u32 v%d, s98, v6" % vQW)
a("v_bfe_u32 v6, v0, 2, 1"); a("v_lshlrev_b32 v6, 9, v6"); a("v_lshl_add_u32 v6, v4, 6, v6"); a("v_lshl_add_u32 v%d, v5, 4, v6" % vQR)
a("v_lshlrev_b32 v6, 9, v9"); a("v_lshl_add_u32 v6, v3, 5, v6"); a("s_lshl_b32 s98, s%d, 7" % sWAVE)
a("v_add_u32 v%d, s98, v6" % vSW)
a("v_and_b32 v6, 1, v0"); a("v_lshlrev_b32 v6, 5, v6"); a("v_lshl_add_u32 v%d, v4, 3, v6" % vBI)
a("v_lshlrev_b32 v6, 4, v5"); a("v_lshl_add_u32 v6, v3, 8, v6"); a("v_lshl_add_u32 v%d, v4, 6, v6" % vHG)
a("v_and_b32 v6, 7, v0"); a("v_lshl_add_u32 v6, v4, 3, v6"); a("v_lshlrev_b32 v%d, 4, v6" % vST)
a("v_lshlrev_b32 v%d, 4, v0" % vL16)
a("s_lshl_b32 s98, s%d, 10" % sWAVE); a("v_add_u32 v%d, s98, v%d" % (vRW, vL16))
a("s_lshl_b32 s98, s100, 3"); a("v_add_u32 v%d, s98, v%d" % (vRR, vL16))
a("s_lshl_b32 s98, s%d, 2" % sWAVE); a("v_mov_b32 v%d, s98" % vFL); a("v_mov_b32 v%d, 0" % vZ)
ACC, PO = 156, 160
for i in range(4): a("v_mov_b32 v%d, 0" % (ACC + i))
make_tag()
a("v_mov_b32 v%d, s%d" % (PO + 1, sTAG)); a("v_mov_b32 v%d, s%d" % (PO + 3, sTAG))
QG, HB, HG, SG, OG = 84, 164, 168, 200, 100
NQ = 2 if QPACK else 4
def issue_q():
    for k in range(NQ): a("buffer_load_dwordx4 %s, v%d, %s, s%d offen sc1" % (v4(QG + 4 * k), vQG, srd(SRD_WS), 94 + k))
def issue_h():
    for k, so in enumerate((66, 73)): a("buffer_load_dwordx4 %s, v%d, %s, s%d offen sc1" % (v4(HG + 4 * k), vHG, srd(SRD_WS), so))
def issue_o():
    for hf in range(2):
        for z in range(2): a("buffer_load_dwordx4 %s, v%d, %s, s69 offen offset:%d sc1" % (v4(OG + 8 * hf + 4 * z), vL16, srd(SRD_WS), 2048 * hf + 1024 * z))
    a("buffer_load_dwordx4 %s, v%d, %s, s68 offen sc1" % (v4(SG), vST, srd(SRD_WS)))
def wdma(s, so):
    for t in range(4):
        a("buffer_load_dwordx4 v%d, %s, s%d offen%s lds" % ((212 + (t & 1)) if s == SRD_T else vWD, srd(s), so, POL))
        if t < 3: a("s_add_u32 m0, m0, 1024"); a("s_add_u32 s%d, s%d, %d" % (so, so, 8 * 896))
def issue_w(lbl):
    a("s_add_u32 m0, s92, %d" % LW)
    wdma(SRD_T, 64)
    a("s_cmp_ge_u32 s90, 7"); a("s_cbranch_scc1 %s" % lbl)
    a("s_add_u32 m0, s92, %d" % LW2)
    wdma(SRD_W2, 65)
    a("%s:" % lbl)
if opt["touch"] == "1":
    a("s_mov_b64 exec, 1")
    a("s_cmp_eq_u32 s%d, 0" % sWAVE); a("s_cbranch_scc0 T1"); a("buffer_load_dword v214, v%d, %s, s64 offen" % (vZ, srd(SRD_T))); a("T1:")
    a("s_cmp_eq_u32 s%d, 1" % sWAVE); a("s_cbranch_scc0 T2"); a("buffer_load_dword v214, v%d, %s, s65 offen" % (vZ, srd(SRD_W2))); a("T2:")
    a("s_cmp_eq_u32 s%d, 2" % sWAVE); a("s_cbranch_scc0 T3"); a("global_load_dword v214, v%d, %s" % (vZ, sp(pOUT))); a("T3:")
    a("s_cmp_eq_u32 s%d, 3" % sWAVE); a("s_cbranch_scc0 T4"); a("buffer_load_dword v214, v%d, %s, 0 offen" % (vZ, srd(SRD_O))); a("T4:")
    a("s_mov_b64 exec, -1")
stamp(2)
a("s_barrier")
for i in range(N1, 16): kload(i)
if int(opt["nv1"]): a("s_barrier")
def small_loads(lbl):
    if EARLY:
        a("s_cmp_lg_u32 s%d, 3" % sWAVE); a("s_cbranch_scc1 K_NOT")
        a("s_cmp_ge_u32 s%d, 4" % sX8); a("s_cselect_b32 s99, s78, s77"); a("s_mov_b64 exec, s[84:85]")
        a("buffer_load_dword v208, v198, %s, s99 offen sc1" % srd(SRD_WS))
        a("s_mov_b64 exec, -1")
        a("K_NOT:")
    a("s_cmp_lg_u32 s%d, 2" % sWAVE); a("s_cbranch_scc1 K_NOX")
    a("buffer_load_ushort v206, v204, %s, s76 offen" % srd(SRD_X)); a("buffer_load_ushort v207, v204, %s, s76 offen offset:32" % srd(SRD_X))
    a("K_NOX:")
    a("s_cmp_ge_u32 s90, 7"); a("s_cbranch_scc1 %s" % lbl)
    a("buffer_load_dwordx2 %s, v%d, %s, s67 offen" % (v2(HB), vBI, srd(SRD_O)))
    issue_h()
    a("%s:" % lbl)
if opt["hlate"] != "1":
    a("s_cmp_ge_u32 s%d, 28" % sR); a("s_cbranch_scc1 K_NOH")
    small_loads("K_NOH")
issue_q()
stamp(3)
if opt["b2b"] == "1": a("s_barrier")
a("s_waitcnt vmcnt(0)")
def copy_b():
    a("s_lshl_b32 s98, s39, %d" % QSH); a("s_add_u32 s98, s98, 0x%x" % QP)
    h_unit(99, 100)
    a("buffer_load_dwordx4 v[116:119], v%d, %s, s98 offen sc1" % (vL16, srd(SRD_WS)))
    if not QPACK: a("buffer_load_dwordx4 v[120:123], v%d, %s, s98 offen offset:1024 sc1" % (vL16, srd(SRD_WS)))
    a("buffer_load_dwordx4 v[124:127], v%d, %s, s99 offen sc1" % (vL16, srd(SRD_WS)))
    a("s_add_u32 s98, s98, 0x%x" % DB); a("s_add_u32 s99, s99, 0x%x" % DB)
    a("s_waitcnt vmcnt(0)")
    a("buffer_store_dwordx4 v[116:119], v%d, %s, s98 offen sc1" % (vL16, srd(SRD_WS)))
    if not QPACK: a("buffer_store_dwordx4 v[120:123], v%d, %s, s98 offen offset:1024 sc1" % (vL16, srd(SRD_WS)))
    a("s_and_b32 s100, s%d, 1" % sB); a("s_lshl_b32 s100, s100, 1"); a("s_lshl_b32 exec_lo, 0x33333333, s100"); a("s_mov_b32 exec_hi, exec_lo")
    a("buffer_store_dwordx4 v[124:127], v%d, %s, s99 offen sc1" % (vL16, srd(SRD_WS)))
    a("s_mov_b64 exec, -1")
def retry_q():
    issue_q()
    if QLOC:
        for k in range(NQ): a("s_xor_b32 s%d, s%d, 0x%x" % (94 + k, 94 + k, DB))
        if opt["nob"] == "2":
            a("s_bitcmp1_b32 s94, 22"); a("s_cbranch_scc1 PQ_nocopy")
            copy_b()
            a("PQ_nocopy:")
def retry_h():
    issue_h()
    if QLOC:
        for so in (66, 73): a("s_xor_b32 s%d, s%d, 0x%x" % (so, so, DB))
if QPACK:
    a("PQ_chk:")
    for k in range(2):
        q = QG + 4 * k; t = QG + 8 + 2 * k
        a("v_perm_b32 v%d, v%d, v%d, s86" % (t, q + 1, q)); a("v_perm_b32 v%d, v%d, v%d, s87" % (t + 1, q + 3, q + 2)); a("v_or_b32 v%d, v%d, v%d" % (t, t, t + 1))
    check_tags([], [QG + 8, QG + 10])
    a("s_cbranch_scc0 PQ_retry")
    a("PQ_ok:")
    a("s_nop 2")
    RETRY.append(("PQ", retry_q, SLP))
    stamp(4)
    for r in range(8): a("v_and_b32 v%d, 0xffffff00, v%d" % (QG + r, QG + r))
    for r in range(4): a("v_add_f32 v%d, v%d, v%d" % (QG + r, QG + r, QG + 4 + r))
    for r in range(4): a("v_mov_b32 v%d, v%d" % (QG + 4 + r, QG + r))
    for r in range(4): a("v_permlane32_swap_b32 v%d, v%d" % (QG + r, QG + 4 + r))
    for r in range(4): a("v_add_f32 v%d, v%d, v%d" % (QG + r, QG + r, QG + 4 + r))
    a("v_cvt_pk_bf16_f32 v%d, v%d, v%d" % (QG, QG, QG + 1)); a("v_cvt_pk_bf16_f32 v%d, v%d, v%d" % (QG + 1, QG + 2, QG + 3))
    a("ds_write_b64 v%d, %s offset:%d" % (vQW, v2(QG), LQ))
    for t in (QG + 8, QG + 10): a("v_cmpx_eq_u32 vcc, s%d, v%d" % (sXCC, t))
else:
    poll_check("PQ", retry_q, [QG + 4 * k + 1 for k in range(4)], [QG + 4 * k + 3 for k in range(4)], sleep=SLP)
    stamp(4)
    a("v_add_f32 v%d, v%d, v%d" % (QG, QG, QG + 4)); a("v_add_f32 v%d, v%d, v%d" % (QG + 2, QG + 2, QG + 6))
    a("v_add_f32 v%d, v%d, v%d" % (QG + 8, QG + 8, QG + 12)); a("v_add_f32 v%d, v%d, v%d" % (QG + 10, QG + 10, QG + 14))
    a("v_add_f32 v%d, v%d, v%d" % (QG, QG, QG + 8)); a("v_add_f32 v%d, v%d, v%d" % (QG + 2, QG + 2, QG + 10))
    a("v_cvt_pk_bf16_f32 v%d, v%d, v%d" % (QG, QG, QG + 2))
    a("ds_write_b32 v%d, v%d offset:%d" % (vQW, QG, LQ))
    for k in range(4): a("v_cmpx_eq_u32 vcc, s%d, v%d" % (sXCC, QG + 4 * k + 3))
a("s_cmp_eq_u64 exec, -1"); a("s_mov_b64 exec, -1")
if QLOC and opt["nob"] == "2":
    a("s_cbranch_scc0 K_COPYB")
    a("K_COPYB_ret:")
a("s_cselect_b32 s98, 2, 1")
a("v_mov_b32 v82, s98")
a("s_waitcnt lgkmcnt(0)")
a("ds_write_b32 v%d, v82 offset:%d" % (vFL, LFLAG))
a("s_mov_b32 s99, %d" % (SPIN * 16))
a("PF:")
a("ds_read_b128 %s, v%d offset:%d" % (v4(QG + 4), vZ, LFLAG))
a("s_waitcnt lgkmcnt(0)")
a("v_min3_u32 v82, v%d, v%d, v%d" % (QG + 4, QG + 5, QG + 6)); a("v_min_u32 v82, v82, v%d" % (QG + 7))
a("v_readfirstlane_b32 s101, v82")
a("s_cmp_lg_u32 s101, 0")
a("s_cbranch_scc1 PF_ok")
a("s_sub_u32 s99, s99, 1")
a("s_cbranch_scc0 PF")
a("PF_ok:")
QF = 92
a("ds_read_b128 %s, v%d offset:%d" % (v4(QF), vQR, LQ)); a("ds_read_b128 %s, v%d offset:%d" % (v4(QF + 4), vQR, LQ + 256))
DQ, SC = 116, 148
a("s_waitcnt lgkmcnt(0)")
for t in range(8): a("%s %s, %s, %s, 0" % (MF, v4(DQ + 4 * t), v4(QF), v4(KR + 8 * t)))
for t in range(8): a("%s %s, %s, %s, %s" % (MF, v4(DQ + 4 * t), v4(QF + 4), v4(KR + 8 * t + 4), v4(DQ + 4 * t)))
for r in range(4):
    for t in range(8):
        qp = "quad_perm:[%d,%d,%d,%d]" % (r, r, r, r)
        if r == 0: a("v_mov_b32_dpp v%d, v%d %s%s" % (SC + t, DQ + 4 * t, qp, DPPM))
        else: a("v_add_f32_dpp v%d, v%d, v%d %s%s" % (SC + t, DQ + 4 * t + r, SC + t, qp, DPPM))
a("ds_write_b128 v%d, %s offset:%d" % (vSW, v4(SC), LS)); a("ds_write_b128 v%d, %s offset:%d" % (vSW, v4(SC + 4), LS + 16))
a("s_cmp_eq_u32 s101, %d" % (2 if opt["local"] == "1" else 3)); a("s_cselect_b32 s98, 0, 0x%x" % (RB - RA))
a("s_add_u32 s68, s68, s98")
if EARLY:
    a("s_cmp_eq_u32 s98, 0"); a("s_cselect_b32 s98, 0x%x, 0" % FLD)
    a("s_and_b32 s99, s%d, 3" % sX8); a("v_cmp_eq_u32 s[84:85], s99, v4")
    a("v_mov_b32 v198, s98"); a("v_cndmask_b32 v198, 0, v198, s[84:85]"); a("v_add_u32 v198, v205, v198")
    a("s_cmp_ge_u32 s%d, 4" % sX8); a("s_cselect_b64 vcc, -1, 0")
    a("v_cndmask_b32 v199, v205, v198, vcc"); a("v_cndmask_b32 v205, v198, v205, vcc")
    a("s_lshr_b32 s99, s%d, 2" % sX8); a("s_cmp_eq_u32 s99, s%d" % sWAVE); a("s_cselect_b32 s70, s98, 0")
    a("s_add_u32 s78, s77, 32768")
a("s_waitcnt lgkmcnt(0)")
stamp(5)
a("s_barrier")
stamp(6)
a("s_cmp_eq_u32 s101, 2"); a("s_cbranch_scc0 K_COPYB2")
a("K_COPYB2_ret:")
a("s_cmp_ge_u32 s%d, 28" % sR)
a("s_cbranch_scc1 KFINISH")
if opt["hlate"] == "1": small_loads("K_NOH")
issue_w("K_W2")
AF = 80
WOF, W2F, DM, DO = 116, 132, 48, 16
def wfrags(lbl):
    for tp in range(4):
        for m in range(2): a("ds_read_b64_tr_b16 %s, v%d offset:%d" % (v2(WOF + 4 * tp + 2 * m), 208 + tp, LW + 512 * m))
    a("s_cmp_ge_u32 s90, 7"); a("s_cbranch_scc1 %s" % lbl)
    for tp in range(4):
        for m in range(2): a("ds_read_b64_tr_b16 %s, v%d offset:%d" % (v2(W2F + 4 * tp + 2 * m), 12 + tp, LW2 + 2048 * m))
    a("s_waitcnt lgkmcnt(0)")
    for tp in range(4): a("%s %s, %s, %s, 0" % (MF, v4(DM + 4 * tp), v4(AF), v4(W2F + 4 * tp)))
    for tp in range(4): a("v_mov_b32 v%d, v%d" % (ACC + tp, DM + 4 * tp))
    a("%s:" % lbl)
if WFIRST: wfrags("NOMLP2")
a("s_barrier")
stamp(8)
OL = [(OG, vL16, 70, 0), (OG + 8, vL16, 70, 1024), (SG, vST, 68, 0)]
OM = [94, 96, 98]
a("s_cmp_eq_u32 s101, %d" % (2 if opt["local"] == "1" else 3)); a("s_cbranch_scc0 K_REMOTE")
for (r, va, so, off) in OL: a("buffer_load_dwordx4 %s, v%d, %s, s%d offen offset:%d sc1" % (v4(r), va, srd(SRD_WS), so, off))
a("K_WF:")
a("s_cmp_ge_u32 s90, 7")
a("s_cbranch_scc1 NOMLP1")
a("s_waitcnt vmcnt(11)")
a("PH_chk:")
for k in range(2):
    q = HG + 4 * k; t = HG + 8 + 2 * k
    a("v_perm_b32 v%d, v%d, v%d, s86" % (t, q + 1, q)); a("v_perm_b32 v%d, v%d, v%d, s87" % (t + 1, q + 3, q + 2)); a("v_or_b32 v%d, v%d, v%d" % (t, t, t + 1))
check_tags([], [HG + 8, HG + 10])
a("s_cbranch_scc0 PH_retry")
a("PH_ok:")
RETRY.append(("PH", retry_h, SLP))
for r in range(8): a("v_and_b32 v%d, 0xffffff00, v%d" % (HG + r, HG + r))
hv = [HG + r for r in range(4)]
for x in hv: a("v_add_f32 v%d, v%d, v%d" % (x, x, x + 4))
for k in range(2): a("v_lshlrev_b32 v%d, 16, v%d" % (HG + 4 + 2 * k, HB + k)); a("v_and_b32 v%d, 0xffff0000, v%d" % (HG + 5 + 2 * k, HB + k))
for x in hv: dpp_red("v_add_f32", x, "quad_perm:[2,3,0,1]")
for x in hv: a("v_add_f32 v%d, v%d, v%d" % (x, x, x + 4))
a("s_mov_b32 s96, 0x%x" % f2u(-LOG2E))
T1, T2 = 16, 24
for k, x in enumerate(hv): a("v_mul_f32 v%d, s96, |v%d|" % (x + 4, x))
for k, x in enumerate(hv): a("v_exp_f32 v%d, v%d" % (x + 4, x + 4))
for k, x in enumerate(hv):
    a("v_cmp_lt_f32 vcc, 0, v%d" % x)
    a("v_mul_f32 v%d, v%d, v%d" % (T1 + k, x + 4, x + 4))
    a("v_cndmask_b32 v%d, 1.0, v%d, vcc" % (T2 + k, T1 + k))
    a("v_cndmask_b32_e64 v%d, v%d, 1.0, vcc" % (T1 + k, T1 + k))
    a("v_fma_f32 v%d, v%d, 2.0, v%d" % (T1 + k, x + 4, T1 + k))
    a("v_fma_f32 v%d, v%d, 2.0, v%d" % (T2 + k, T2 + k, T1 + k))
for k, x in enumerate(hv): a("v_rcp_f32 v%d, v%d" % (T2 + k, T2 + k))
for k, x in enumerate(hv): a("v_mul_f32 v%d, v%d, v%d" % (x, x, T1 + k))
for k, x in enumerate(hv): a("v_mul_f32 v%d, v%d, v%d" % (x, x, T2 + k))
AF = 80
a("v_cvt_pk_bf16_f32 v%d, v%d, v%d" % (HG, HG, HG + 1)); a("v_cvt_pk_bf16_f32 v%d, v%d, v%d" % (HG + 1, HG + 2, HG + 3))
for k in range(4): a("v_mov_b32_dpp v%d, v%d quad_perm:[%d,%d,%d,%d]%s" % ((AF + k, HG + (k & 1)) + (k >> 1,) * 4 + (DPPM,)))
a("NOMLP1:")
a("s_waitcnt vmcnt(3)")
stamp(7)
wfrags("NOMLP2")
a("s_waitcnt vmcnt(0)")
a("PO_chk:")
for k in range(2):
    r = OL[k][0]
    a("v_max3_u32 v%d, v%d, v%d, v%d" % (r + 4, r, r + 1, r + 2)); a("v_max_u32 v%d, v%d, v%d" % (r + 4, r + 4, r + 3))
    a("v_cmp_eq_u32 %s, -1, v%d" % (sp(OM[k]), r + 4))
a("v_cmp_ne_u32 vcc, s%d, v%d" % (sTAG, SG + 1)); a("v_cmp_ne_u32 %s, s%d, v%d" % (sp(OM[2]), sTAG, SG + 3)); a("s_or_b64 %s, %s, vcc" % (sp(OM[2]), sp(OM[2])))
a("s_or_b64 vcc, %s, %s" % (sp(OM[0]), sp(OM[1]))); a("s_or_b64 vcc, vcc, %s" % sp(OM[2]))
a("s_cbranch_scc1 PO_retry")
a("PO_ok:")
def issue_om():
    a("s_cmp_eq_u32 s101, %d" % (2 if opt["local"] == "1" else 3)); a("s_cbranch_scc0 PO_ok")
    for k, ((r, va, so, off), m) in enumerate(zip(OL, OM)):
        a("s_mov_b64 exec, %s" % sp(m)); a("s_cbranch_execz PO_s%d" % k)
        a("buffer_load_dwordx4 %s, v%d, %s, s%d offen offset:%d sc1" % (v4(r), va, srd(SRD_WS), so, off))
        a("PO_s%d:" % k)
    a("s_mov_b64 exec, -1")
RETRY.append(("PO", issue_om, int(opt["oslp"])))
stamp(9)
RG = 20
RV = (205, 205)
a("v_mov_b32 v%d, v%d" % (SG + 1, SG))
a("s_waitcnt lgkmcnt(0)")
fops = [lambda: dpp_red("v_max_f32", SG + 1, "quad_perm:[1,0,3,2]"), lambda: dpp_red("v_max_f32", SG + 1, "quad_perm:[2,3,0,1]"),
        lambda: dpp_red("v_max_f32", SG + 1, "row_half_mirror"),
        lambda: (a("v_sub_f32 v%d, v%d, v%d" % (SG, SG, SG + 1)), a("v_exp_f32 v%d, v%d" % (SG, SG))),
        lambda: a("v_mul_f32 v%d, v%d, v%d" % (SG + 2, SG + 2, SG)),
        lambda: dpp_red("v_add_f32", SG + 2, "quad_perm:[1,0,3,2]"), lambda: dpp_red("v_add_f32", SG + 2, "quad_perm:[2,3,0,1]"),
        lambda: dpp_red("v_add_f32", SG + 2, "row_half_mirror")]
k = 0
for hf in range(2):
    for tp in range(4):
        a("%s %s, %s, %s, 0" % (MF, v4(DO + 16 * hf + 4 * tp), v4(OG + 8 * hf), v4(WOF + 4 * tp)))
        fops[k](); k += 1
a("v_rcp_f32 v%d, v%d" % (SG + 2, SG + 2)); a("v_mul_f32 v%d, v%d, v%d" % (SG, SG, SG + 2))
for hf in range(2):
    for r in range(4):
        for tp in range(4):
            a("v_fmac_f32_dpp v%d, v%d, v%d row_newbcast:%d%s" % (ACC + tp, SG, DO + 16 * hf + 4 * tp + r, 4 * hf + r, DPPM))
a("ds_write_b128 v%d, %s offset:%d" % (vRW, v4(ACC), LRED))
a("s_waitcnt lgkmcnt(0)")
a("s_barrier")
for u in range(4): a("ds_read_b64 %s, v%d offset:%d" % (v2(16 + 2 * u), vRR, LRED + 1024 * u))
if EARLY:
    a("s_cmp_lg_u32 s%d, 0" % sWAVE); a("s_cbranch_scc1 K_NOE")
    for y in range(2): a("buffer_load_dwordx4 %s, v%d, %s, s%d offen%s" % (v4(RG + 4 * y), RV[y], srd(SRD_WS), 77 + y, RPOL))
    a("K_NOE:")

a("s_waitcnt lgkmcnt(0)")
a("v_add_f32 v16, v16, v18"); a("v_add_f32 v17, v17, v19"); a("v_add_f32 v20, v20, v22"); a("v_add_f32 v21, v21, v23")
a("v_add_f32 v%d, v16, v20" % PO); a("v_add_f32 v%d, v17, v21" % (PO + 2))
NC = int(opt["ncopy"]); CST = 0x800000
if EARLY:
    a("s_cmp_lt_u32 s%d, 2" % sWAVE)
    a("s_cbranch_scc1 K_LOC")
    a("buffer_store_dwordx4 %s, v%d, %s, s71 offen%s" % (v4(PO), vL16, srd(SRD_WS), RPOL))
    stamp(10)
    a("s_branch KFINISH")
    a("K_LOC:")
    a("s_cmp_eq_u32 s70, 0"); a("s_cbranch_scc1 K_NOLOC")
    a("s_add_u32 s71, s71, s70"); a("s_mov_b64 exec, s[84:85]")
    a("buffer_store_dwordx4 %s, v%d, %s, s71 offen" % (v4(PO), vL16, srd(SRD_WS)))
    a("s_mov_b64 exec, -1")
    a("K_NOLOC:")
    stamp(10)
    a("s_cmp_lg_u32 s%d, 0" % sWAVE)
    a("s_cbranch_scc1 KFINISH")
else:
    a("s_cmp_lt_u32 s%d, 2" % sWAVE)
    a("s_cbranch_scc1 KFINISH")
    a("buffer_store_dwordx4 %s, v%d, %s, s71 offen%s" % (v4(PO), vL16, srd(SRD_WS), RPOL))
    stamp(10)
    a("s_cmp_lg_u32 s%d, 2" % sWAVE)
    a("s_cbranch_scc1 KFINISH")
a("s_mov_b64 %s, %s" % (sp(SRD_O), sp(pOUT)))
a("v_lshlrev_b32 v206, 16, v206"); a("v_lshlrev_b32 v207, 16, v207")
if EARLY:
    a("s_waitcnt vmcnt(0)")
    a("s_branch PR_chk")
else:
    a("s_mov_b64 s[94:95], -1"); a("s_mov_b64 s[96:97], -1")
    a("s_add_u32 s78, s77, 32768")
    if opt["ackw"] == "1": a("s_waitcnt vmcnt(0)")
    if int(opt["rdel"]): a("s_sleep %d" % int(opt["rdel"]))
a("PR:")
for y in range(2):
    a("s_mov_b64 exec, s[%d:%d]" % (94 + 2 * y, 95 + 2 * y))
    a("s_cbranch_execz PR_s%d" % y)
    a("buffer_load_dwordx4 %s, v%d, %s, s%d offen%s" % (v4(RG + 4 * y), RV[y], srd(SRD_WS), 77 + y, RPOL))
    a("PR_s%d:" % y)
a("s_mov_b64 exec, -1")
a("s_waitcnt vmcnt(0)")
a("PR_chk:")
for y in range(2):
    a("v_cmp_ne_u32 vcc, s%d, v%d" % (sTAG, RG + 1 + 4 * y)); a("v_cmp_ne_u32 s[%d:%d], s%d, v%d" % (94 + 2 * y, 95 + 2 * y, sTAG, RG + 3 + 4 * y))
    a("s_or_b64 s[%d:%d], s[%d:%d], vcc" % (94 + 2 * y, 95 + 2 * y, 94 + 2 * y, 95 + 2 * y))
a("v_add_f32 v18, v%d, v%d" % (RG, RG + 4)); a("v_add_f32 v19, v%d, v%d" % (RG + 2, RG + 6))
a("s_or_b64 vcc, s[94:95], s[96:97]")
a("s_cbranch_scc0 PR_ok")
a("s_cmp_eq_u32 s%d, 0" % sSPIN); a("s_cbranch_scc1 PR_ok"); a("s_sub_u32 s%d, s%d, 1" % (sSPIN, sSPIN))
if int(opt["rsl2"]): a("s_sleep %d" % int(opt["rsl2"]))
a("s_branch PR")
a("PR_ok:")
ROLE[0] = "R"
if STAMPS: a("s_memrealtime s[42:43]"); a("s_waitcnt lgkmcnt(0)")
stamp(12)
for x in (18, 19): dpp_red("v_add_f32", x, "row_ror:4")
for x in (18, 19): dpp_red("v_add_f32", x, "row_ror:8")
rows_allreduce("v_add_f32", (18, 19), (8, 9))
a("v_add_f32 v18, v18, v206"); a("v_add_f32 v19, v19, v207")
a("v_cvt_pk_bf16_f32 v18, v18, v19")
a("s_mov_b64 exec, 0xf")
a("buffer_store_short v18, v204, %s, s76 offen" % srd(SRD_O))
a("buffer_store_short_d16_hi v18, v204, %s, s76 offen offset:32" % srd(SRD_O))
a("s_mov_b64 exec, -1")
a("s_cmp_lg_u32 s2, 0")
a("s_cbranch_scc1 KFINISH")
a("v_mov_b32 v8, s%d" % sTAG)
a("s_mov_b64 exec, 1")
a("buffer_store_dword v8, v%d, %s, 0 offen%s" % (vZ, srd(SRD_WS), "" if opt["eplain"] == "1" else " sc1"))
a("s_mov_b64 exec, -1")
a("KFINISH:")
if STAMPS: a("s_add_u32 s%d, s%d, 4" % (sWAVE, sWAVE))
a("FINISH:")
if STAMPS == 1:
    a("s_waitcnt vmcnt(0)")
    stamp(11)
    a("s_lshl_b32 s94, s2, 3"); a("s_add_u32 s94, s94, s%d" % sWAVE); a("s_lshl_b32 s94, s94, 7"); a("s_add_u32 s94, s94, 0x%x" % STAMP_OFF)
    a("v_mov_b32 v1, 0")
    a("s_mov_b64 exec, 1")
    for i in range(12):
        a("v_mov_b32 v4, s%d" % (40 + 2 * i)); a("v_mov_b32 v5, s%d" % (41 + 2 * i))
        a("buffer_store_dwordx2 v[4:5], v1, %s, s94 offen offset:%d" % (srd(SRD_WS), 8 * i))
        a("s_nop 1")
if STAMPS == 2:
    a("s_waitcnt vmcnt(0)")
    stamp(11)
    a("s_cmp_ge_u32 s%d, 28" % sR); a("s_cbranch_scc1 EXIT")
    a("s_and_b32 s94, s%d, 3" % sWAVE); a("s_cmp_lg_u32 s94, 0"); a("s_cbranch_scc1 EXIT")
    a("s_mov_b64 %s, s[84:85]" % sp(SRD_O)); a("s_mov_b32 s%d, 256" % (SRD_O + 2))
    a("s_lshl_b32 s94, s%d, 3" % sWAVE)
    a("v_mov_b32 v1, 0")
    a("s_mov_b64 exec, 1")
    a("s_not_b32 s95, s40")
    sel0 = [None, 0, 3, 4, 7, 9, 10, 11]
    sel4 = [1, 4, 5, 6, 8, 9, 10, 11]
    for i in range(8):
        a("s_cmp_eq_u32 s%d, 0" % sWAVE)
        a("s_cselect_b32 s96, %s, s%d" % ("s95" if sel0[i] is None else "s%d" % (40 + 2 * sel0[i]), 40 + 2 * sel4[i]))
        a("v_mov_b32 v4, s96")
        a("buffer_atomic_umax v4, v1, %s, s94 offen offset:%d sc1" % (srd(SRD_O), 4 * i))
        a("s_nop 1")
if int(opt["hold"]):
    if int(opt["holdx"]) >= 0:
        a("s_cmp_lg_u32 s%d, %d" % (sX8, int(opt["holdx"]))); a("s_cbranch_scc1 EXIT")
    a("s_add_u32 s40, s40, %d" % int(opt["hold"]))
    a("HOLD:")
    a("s_sleep 2")
    a("s_memrealtime s[42:43]"); a("s_waitcnt lgkmcnt(0)")
    a("s_sub_u32 s44, s42, s40"); a("s_cmp_lt_i32 s44, 0"); a("s_cbranch_scc1 HOLD")
a("EXIT:")
a("s_endpgm")
emit_retries()
if QLOC and opt["nob"] == "2":
    a("K_COPYB:")
    copy_b()
    a("s_waitcnt vmcnt(0)")
    a("s_cmp_eq_u32 s98, 0")
    a("s_branch K_COPYB_ret")
a("K_COPYB2:")
copy_b()
a("s_branch K_COPYB2_ret")
a("K_REMOTE:")
issue_o()
a("s_waitcnt vmcnt(0)")
check_tags([OG + 4 * k + j for k in range(4) for j in (1, 3)] + [SG + 1, SG + 3])
a("s_cbranch_scc1 K_REMOTE_ok")
a("s_cmp_eq_u32 s%d, 0" % sSPIN); a("s_cbranch_scc1 K_REMOTE_ok"); a("s_sub_u32 s%d, s%d, 1" % (sSPIN, sSPIN))
a("s_sleep 4")
a("s_branch K_REMOTE")
a("K_REMOTE_ok:")
for hf in range(2):
    o = OG + 8 * hf
    a("v_pk_mov_b32 %s, %s, %s op_sel:[0,0]" % (v2(o), v2(o), v2(o + 2)))
    a("v_pk_mov_b32 %s, %s, %s op_sel:[0,0]" % (v2(o + 2), v2(o + 4), v2(o + 6)))
a("s_branch K_WF")
a("V_REMOTE:")
a("s_add_u32 s95, s95, 0x%x" % (RB - RA))
a("s_lshl_b32 s96, s96, 1"); a("s_add_u32 s96, s96, s97"); a("s_add_u32 s96, s96, 0x%x" % RB)
a("v_lshlrev_b32 v7, 1, v10"); a("v_lshl_add_u32 v7, v5, 8, v7"); a("v_bfe_u32 v9, v0, 3, 1"); a("v_lshl_add_u32 v7, v9, 10, v7")
for r in (OO + 1, OO + 3): a("v_mov_b32 v%d, s%d" % (r, sTAG))
a("s_mov_b64 exec, s[92:93]")
a("buffer_store_dwordx4 %s, v6, %s, s95 offen sc1" % (v4(STT), srd(SRD_WS)))
a("s_mov_b64 exec, -1")
a("s_nop 7")
o_epilogue()
a("buffer_store_dwordx4 %s, v7, %s, s96 offen sc1" % (v4(OO), srd(SRD_WS)))
a("s_branch V_PUB")
lines = hazard.fix(a.lines)
body = "\n".join(lines) + "\n"
body += ".fill 2600, 4, 0xbf810000\n"
DOC = """; ---------------------------------------------------------------------------------------------
; group whose 32 workgroups all report the same XCC id the hand-off goes through their shared L2;
; ---------------------------------------------------------------------------------------------
"""
txt = wrap(body, 256, 512, LDS_BYTES, vgpr=216)
txt = txt.replace('.amdgcn_target', DOC + '.amdgcn_target', 1)
open(sys.argv[1], "w").write(txt)
```
